```python
import torch

def _softmax(x, axis=-1):
    return torch.softmax(x, dim=axis)
def _gelu(x):
    return torch.nn.functional.gelu(x, approximate="tanh")
def _silu(x):
    return torch.nn.functional.silu(x)
def _sigmoid(x):
    return torch.sigmoid(x)
def _layernorm(x, axis=-1, eps=1e-5):
    m = x.mean(dim=axis, keepdim=True)
    v = x.var(dim=axis, keepdim=True, unbiased=False)
    return (x - m) / torch.sqrt(v + eps)
def _scatter_add(tgt, idx, src, axis=0):
    return tgt.clone().index_add_(axis, idx, src)
def _segment_sum(src, seg, n):
    out = torch.zeros((n,) + src.shape[1:], dtype=src.dtype)
    return out.index_add_(0, seg, src)
def _pad(x, pw):
    flat = tuple(v for pair in reversed(pw) for v in pair)
    return torch.nn.functional.pad(x, flat)

kernel_name = 'sequential_preLN__ssm_conv_h3__mixer_channel_mlp__prompt'

def setup_inputs():

    _w = (lambda a: (lambda t: t.to(torch.bfloat16) if t.is_floating_point() else t)(torch.as_tensor(a)))
    def _A_setup():
        B, S, D = 1, 2048, 640
        ks = 4
        return {
            "q": _w((lambda *s: torch.randn(*s, dtype=torch.bfloat16) * 0.05)(B, S, D)),
            "k": _w((lambda *s: torch.randn(*s, dtype=torch.bfloat16) * 0.2)(B, S, D)),
            "v": _w((lambda *s: torch.randn(*s, dtype=torch.bfloat16) * 0.2)(B, S, D)),
            "shift_k": _w((lambda *s: torch.randn(*s, dtype=torch.bfloat16) * 0.2)(D, ks) * 0.5),
            "ssm_k": _w((lambda *s: torch.randn(*s, dtype=torch.bfloat16) * 0.8)(D, S) * (1.0 / S ** 0.5)),
            "ssm_D": _w((lambda *s: torch.randn(*s, dtype=torch.bfloat16) * 0.2)(D)),
        }
    _A_in = _A_setup()

    def _B_setup():
        B, S, D, F = 1, 2048, 640, 1728
        return {
            "x": _w((lambda *s: torch.randn(*s, dtype=torch.bfloat16) * 0.05)(B, S, D)),
            "w1": _w((lambda *s: torch.randn(*s, dtype=torch.bfloat16) * 0.8)(D, F) * (D ** -0.5)),
            "b1": _w((lambda *s: torch.randn(*s, dtype=torch.bfloat16) * 0.4)(F)),
            "w2": _w((lambda *s: torch.randn(*s, dtype=torch.bfloat16) * 0.05)(F, D) * (F ** -0.5)),
            "b2": _w((lambda *s: torch.randn(*s, dtype=torch.bfloat16) * 0.05)(D)),
        }
    _B_in = _B_setup()

    return {
        "A_q": _A_in["q"],
        "A_k": _A_in["k"],
        "A_v": _A_in["v"],
        "A_shift_k": _A_in["shift_k"],
        "A_ssm_k": _A_in["ssm_k"],
        "A_ssm_D": _A_in["ssm_D"],
        "B_x": _B_in["x"],
        "B_w1": _B_in["w1"],
        "B_b1": _B_in["b1"],
        "B_w2": _B_in["w2"],
        "B_b2": _B_in["b2"],
    }

def reference(A_q, A_k, A_v, A_shift_k, A_ssm_k, A_ssm_D, B_x, B_w1, B_b1, B_w2, B_b2):
    def _A_ref(q, k, v, shift_k, ssm_k, ssm_D):
        B, S, D = q.shape
        ks = shift_k.shape[-1]
        k_pad = _pad(k, ((0, 0), (ks - 1, 0), (0, 0)))
        k_shift = torch.zeros_like(k)
        for t in range(ks):
            k_shift = k_shift + k_pad[:, t:t + S, :] * shift_k[:, ks - 1 - t][None, None, :]
        kv = k_shift * v
        L = 2 * S
        kv_pad = _pad(kv, ((0, 0), (0, S), (0, 0)))
        kf_pad = _pad(ssm_k, ((0, 0), (0, S)))
        kv_f = (lambda x, axes=(-2,-1): torch.fft.rfft2(x.float(), dim=axes))(kv_pad[:, None, :, :], axes=(1, 2))
        kf_f = (lambda x, axes=(-2,-1): torch.fft.rfft2(x.float(), dim=axes))(kf_pad[:, None, :], axes=(1, 2))
        kf_f = (lambda x, *d: x.permute(*d))(kf_f, 1, 2, 0)
        y_f = kv_f * kf_f[None, :, :, :]
        y = (lambda x, s, axes=(-2,-1): torch.fft.irfft2(x, s=s, dim=axes).to(torch.bfloat16))(y_f, (1, L), axes=(1, 2))[:, 0, :S, :]
        y = y + kv * ssm_D[None, None, :]
        return q * y

    def _B_ref(x, w1, b1, w2, b2):
        y = _layernorm(x, axis=-1)
        h = _gelu(torch.einsum("bsd,df->bsf", y, w1) + b1)
        return torch.einsum("bsf,fd->bsd", h, w2) + b2

    x = A_q
    h = x + _A_ref(_layernorm(x, axis=-1), A_k, A_v, A_shift_k, A_ssm_k, A_ssm_D)
    h2 = h + _B_ref(_layernorm(h, axis=-1), B_w1, B_b1, B_w2, B_b2)
    return h2
```

```python
import re

REG_RE = re.compile(r'^(-|\|)?(abs\()?([vas])(\d+|\[(\d+):(\d+)\])\)?\|?$')

def regs_of(tok):
    tok = tok.strip()
    if tok in ('vcc', 'vcc_lo', 'vcc_hi'):
        return [('s', 'vcc')]
    if tok in ('exec', 'exec_lo', 'exec_hi'):
        return [('s', 'exec')]
    if tok == 'm0':
        return [('s', 'm0')]
    m = REG_RE.match(tok)
    if not m:
        return []
    k = m.group(3)
    if m.group(5) is not None:
        return [(k, i) for i in range(int(m.group(5)), int(m.group(6)) + 1)]
    return [(k, int(m.group(4)))]

TRANS = ('v_exp_f32', 'v_log_f32', 'v_rcp_f32', 'v_rsq_f32', 'v_sqrt_f32', 'v_sin_f32', 'v_cos_f32')

class Ins:
    __slots__ = ('text', 'op', 'w', 'r', 'kind', 'srcab', 'srcc', 'dpp', 'data', 'passes')

def split_ops(s):
    out, depth, cur = [], 0, ''
    for ch in s:
        if ch in '[(':
            depth += 1
        if ch in '])':
            depth -= 1
        if ch == ',' and depth == 0:
            out.append(cur.strip()); cur = ''
        else:
            cur += ch
    if cur.strip():
        out.append(cur.strip())
    return out

def parse(text):
    i = Ins()
    i.text = text
    parts = text.split(None, 1)
    op = parts[0]
    i.op = op
    rest = parts[1] if len(parts) > 1 else ''
    ops = split_ops(rest)
    mods = ''
    if ops:
        last = ops[-1].split(None, 1)
        ops[-1] = last[0]
        mods = last[1] if len(last) > 1 else ''
    R = [regs_of(o) for o in ops]
    flat = lambda L: [x for l in L for x in l]
    i.w, i.r, i.srcab, i.srcc, i.data = [], [], [], [], []
    i.dpp = '_dpp' in op
    i.passes = 0
    if op.startswith('v_mfma'):
        i.kind = 'mfma'
        i.w = R[0]; i.srcab = R[1] + R[2]; i.srcc = R[3]; i.r = i.srcab + i.srcc
        i.passes = 8 if '32x32' in op else 4
    elif op.startswith('v_'):
        i.kind = 'valu'
        base = op.replace('_e32', '').replace('_e64', '').replace('_dpp', '').replace('_sdwa', '')
        if base in TRANS:
            i.kind = 'trans'
        if base.startswith('v_dot'):
            i.kind = 'dot'
        if base in ('v_swap_b32', 'v_permlane16_swap_b32', 'v_permlane32_swap_b32'):
            i.w = R[0] + R[1]; i.r = R[0] + R[1]
        elif base in ('v_add_co_u32', 'v_sub_co_u32', 'v_addc_co_u32', 'v_subb_co_u32'):
            i.w = R[0] + R[1]; i.r = flat(R[2:])
        else:
            i.w = R[0]; i.r = flat(R[1:])
            if base in ('v_fmac_f32', 'v_dot2c_f32_bf16', 'v_writelane_b32') or i.dpp or 'sdwa' in op:
                i.r = i.r + R[0]
        if base.startswith('v_dot'):
            i.srcab = R[1] + R[2]
            i.srcc = R[3] if len(R) > 3 else R[0]
    elif op.startswith('ds_'):
        i.kind = 'ds'
        if op.startswith('ds_read') or op.startswith('ds_bpermute') or op.startswith('ds_swizzle') or op.startswith('ds_permute'):
            i.w = R[0]; i.r = flat(R[1:])
            if 'd16' in op:
                i.r = i.r + R[0]
        else:
            i.r = flat(R); i.data = flat(R[1:])
    elif op.startswith('buffer_') or op.startswith('global_'):
        i.kind = 'vmem'
        allm = mods.split()
        if op in ('buffer_wbl2', 'buffer_inv'):
            pass
        elif 'lds' in allm or '_lds_' in op:
            i.r = flat(R) + [('s', 'm0')]
            i.kind = 'dma'
        elif 'load' in op:
            i.w = R[0]; i.r = flat(R[1:])
            if 'd16' in op:
                i.r = i.r + R[0]
        elif 'store' in op:
            i.r = flat(R)
            d = R[0] if op.startswith('buffer_') else R[1]
            if 'x3' in op or 'x4' in op:
                i.data = d
        elif 'atomic' in op:
            if op.startswith('buffer_'):
                i.r = flat(R)
                if 'sc0' in allm:
                    i.w = R[0]
            else:
                if 'sc0' in allm:
                    i.w = R[0]; i.r = flat(R[1:])
                else:
                    i.r = flat(R)
        else:
            raise ValueError(text)
    elif op.startswith('s_load') or op in ('s_memtime', 's_memrealtime'):
        i.kind = 'smem'
        i.w = R[0]; i.r = flat(R[1:])
    elif op.startswith('s_'):
        i.kind = 'salu'
        if op in ('s_waitcnt', 's_nop', 's_barrier', 's_sleep', 's_setprio', 's_endpgm', 's_branch') or op.startswith('s_cbranch'):
            i.kind = 'ctl'
        elif op.startswith('s_cmp') or op.startswith('s_bitcmp'):
            i.r = flat(R)
        elif 'saveexec' in op:
            i.w = R[0] + [('s', 'exec')]; i.r = flat(R[1:])
        else:
            i.w = R[0]; i.r = flat(R[1:])
            if op in ('s_addk_i32', 's_mulk_i32'):
                i.r = i.r + R[0]
    else:
        raise ValueError('unknown op ' + text)
    return i

def states(ins):
    if ins.op == 's_nop':
        return int(ins.text.split()[1], 0) + 1
    return 1

VAL = ('valu', 'trans', 'dot')

def need(p, c):
    n = 0
    pw, cr, cw = set(p.w), set(c.r), set(c.w)
    if p.kind in VAL:
        vw = {x for x in pw if x[0] != 's'}
        sw = {x for x in pw if x[0] == 's'}
        if c.kind == 'mfma' and vw & cr:
            n = max(n, 2)
        if c.kind in VAL and vw & cr:
            if c.dpp or 'permlane' in c.op:
                n = max(n, 2)
            if c.op.startswith('v_readlane') or c.op.startswith('v_readfirstlane'):
                n = max(n, 1)
            if p.kind == 'trans':
                n = max(n, 1)
            if 'sdwa' in p.op or 'op_sel:' in p.text:
                n = max(n, 1)
        if p.kind == 'dot' and (vw & (cr | cw)):
            same = c.kind == 'dot' and c.op == p.op
            if not (same and not (vw & set(c.srcab))):
                n = max(n, 3)
        if sw & cr:
            if c.kind in VAL:
                n = max(n, 4 if ('readlane' in c.op or 'writelane' in c.op) else 2)
            if c.kind in ('vmem', 'dma'):
                n = max(n, 5)
            if c.kind in ('salu', 'smem'):
                n = max(n, 1)
    if p.kind == 'mfma':
        big = {4: 8, 8: 12}[p.passes]
        if c.kind == 'mfma':
            if pw & set(c.srcab):
                n = max(n, big)
            if pw & set(c.srcc) and not (list(p.w) == list(c.srcc) and p.passes == c.passes):
                n = max(n, big - 2)
            if pw & cw and not (list(p.w) == list(c.w)):
                n = max(n, big - 2)
            if list(p.w) == list(c.w) and list(c.srcc) != list(c.w):
                n = max(n, big - 2)
        elif pw & (cr | cw):
            n = max(n, big)
        if c.kind in VAL and set(p.srcc) & cw:
            n = max(n, {4: 3, 8: 7}[p.passes])
    if p.kind == 'salu' and ('s', 'm0') in pw and c.kind == 'dma':
        n = max(n, 1)
    if p.kind == 'vmem' and p.data and set(p.data) & cw:
        n = max(n, 2)
    return n

class Asm:
    def __init__(self):
        self.lines = []
        self.hist = []
        self.vm = []
        self.lg = []
        self.seq = 0
        self.count = 0
        self.nops = 0

    def raw(self, s):
        self.lines.append(s)

    def comment(self, s):
        self.lines.append('    ; ' + s)

    def _put(self, ins):
        self.lines.append('    ' + ins.text)
        self.hist.append(ins)
        if len(self.hist) > 24:
            self.hist.pop(0)
        self.count += 1

    def _waits_for(self, ins):
        touched = set(ins.r) | set(ins.w)
        v = None
        for k, (s, d) in enumerate(self.vm):
            if d & touched:
                v = len(self.vm) - 1 - k
        l = None
        for k, (s, d, sm) in enumerate(self.lg):
            if d & touched:
                l = len(self.lg) - 1 - k
        if l is not None and any(sm for _, _, sm in self.lg):
            l = 0
        return v, l

    def wait(self, vm=None, lg=None):
        parts = []
        if vm is not None and vm < len(self.vm):
            vm = min(vm, 63)
            parts.append('vmcnt(%d)' % vm)
            self.vm = self.vm[len(self.vm) - vm:] if vm else []
        if lg is not None and lg < len(self.lg):
            if any(sm for _, _, sm in self.lg):
                lg = 0
            lg = min(lg, 15)
            parts.append('lgkmcnt(%d)' % lg)
            self.lg = self.lg[len(self.lg) - lg:] if lg else []
        if parts:
            self._put(parse('s_waitcnt ' + ' '.join(parts)))

    def force_wait(self, vm=None, lg=None):
        parts = []
        if vm is not None:
            parts.append('vmcnt(%d)' % vm)
            self.vm = self.vm[len(self.vm) - vm:] if vm and vm < len(self.vm) else ([] if vm == 0 else self.vm)
        if lg is not None:
            parts.append('lgkmcnt(%d)' % lg)
            self.lg = self.lg[len(self.lg) - lg:] if lg and lg < len(self.lg) else ([] if lg == 0 else self.lg)
        self._put(parse('s_waitcnt ' + ' '.join(parts)))

    def wait_vm_tok(self, tok):
        n = sum(1 for s, _ in self.vm if s > tok)
        if any(s <= tok for s, _ in self.vm):
            self.wait(vm=n)

    def wait_lg_tok(self, tok):
        n = sum(1 for s, _, _ in self.lg if s > tok)
        if any(s <= tok for s, _, _ in self.lg):
            self.wait(lg=n)

    def e(self, text):
        ins = parse(text)
        v, l = self._waits_for(ins)
        if v is not None or l is not None:
            self.wait(v, l)
        dist, pad = 0, 0
        for p in reversed(self.hist):
            n = need(p, ins)
            if n > dist:
                pad = max(pad, n - dist)
            dist += states(p)
            if dist >= 20:
                break
        if pad:
            self.nops += pad
            self._put(parse('s_nop %d' % (pad - 1)))
        self._put(ins)
        self.seq += 1
        if ins.kind in ('vmem', 'dma'):
            self.vm.append((self.seq, set(ins.w)))
        elif ins.kind == 'ds':
            self.lg.append((self.seq, set(ins.w), False))
        elif ins.kind == 'smem':
            self.lg.append((self.seq, set(ins.w), True))
        return self.seq

    def label(self, name, keep=False):
        self.lines.append(name + ':')

    def fence(self, n=12):
        self._put(parse('s_nop %d' % (n - 1)))

    def state(self):
        return (list(self.hist), list(self.vm), list(self.lg))

    def restore(self, st):
        self.hist, self.vm, self.lg = list(st[0]), list(st[1]), list(st[2])

    def reset(self):
        self.hist, self.vm, self.lg = [], [], []

    def align8(self):
        self.lines.append('    .p2align 3')

    def text(self):
        return '\n'.join(self.lines) + '\n'

def vr(b, n=1, k='v'):
    return '%s%d' % (k, b) if n == 1 else '%s[%d:%d]' % (k, b, b + n - 1)
def ar(b, n=1):
    return vr(b, n, 'a')
def sr(b, n=1):
    return vr(b, n, 's')
```

```python
import numpy as np
U_OFF = 0
ST_OFF = 0x280000
H1_OFF = 0x290000
H2_OFF = 0x510000
WS_END = H2_OFF + 64 * 112 * 1024
FLAG_OFF = 0xC10000
STAMP_OFF = 0xD00000
STAMP_BYTES = 256 * 32 * 8
WS_SIZE = 0xE00000

def check(w, t, bf2f, rel):
    u = bf2f(w[U_OFF:U_OFF + 160 * 16384].view(np.uint16)).reshape(160, 128, 2, 4, 8)
    got = np.zeros((2048, 640), np.float32)
    for blk in range(128):
        for c in range(4):
            s = c ^ ((blk >> 1) & 3)
            for rho in range(2):
                got[16 * blk + rho:16 * blk + 16:2, c::4] = u[:, blk, rho, s, :].T
    print('u rel', rel(got, t['u']), 'nonfinite', (~np.isfinite(got)).sum())
    st = w[ST_OFF:ST_OFF + 16384].view(np.float32).reshape(2048, 2)
    q = t['q']; r = 1 / np.sqrt(q.var(-1) + 1e-5)
    print('stats rel', rel(st[:, 0], r), rel(st[:, 1], -q.mean(-1) * r))
    h = bf2f(w[H1_OFF:H1_OFF + 80 * 32768].view(np.uint16)).reshape(80, 2048, 8).transpose(1, 0, 2).reshape(2048, 640)
    print('h rel', rel(h, t['h']), 'nonfinite', (~np.isfinite(h)).sum())
    e = np.abs(h - t['h'])
    e[~np.isfinite(e)] = 1e9
    bt = np.where(e.max(1) > 0.01)[0]; bc = np.where(e.max(0) > 0.01)[0]
    print('  bad tokens', len(bt), bt[:20], 'bad chans', len(bc), bc[:20])
    H = bf2f(w[H2_OFF:H2_OFF + 64 * 112 * 1024].view(np.uint16)).reshape(64, 16, 7, 4, 16, 2, 4)
    Hg = H.transpose(0, 5, 4, 1, 2, 3, 6).reshape(2048, 16, 112)
    print('H rel', rel(Hg[:, :, :108].reshape(2048, 1728), t['H']), 'dead max', np.abs(Hg[:, :, 108:]).max())
```

```python
from asmlib import *
import layout as L

NAME = 'sequential_preLN__ssm_conv_h3__mixer_channel_mlp__prompt'
S_X, S_R, S_W = 3, 4, 5
SRD = dict(q=8, k=12, v=16, sk=20, hk=24, sd=28, w1=32, b1=36, w2=40, b2=44, out=48, ws=52, dbg=56)
KOFF = dict(q=0, k=8, v=16, sk=24, hk=32, sd=40, w1=56, b1=64, w2=72, b2=80, out=88, dbg=96, ws=104)
SIZE = dict(q=2621440, k=2621440, v=2621440, sk=5120, hk=2621440, sd=1280, w1=2211840, b1=3456, w2=2211840,
            b2=1280, out=2621440, dbg=256, ws=L.WS_SIZE)
def srd(n): return sr(SRD[n], 4)
BIG = 0x7ff00000
V_LANE = 0

def prologue(a, names, endlabel):
    a.e('s_cmp_ge_u32 s2, 256')
    a.e('s_cbranch_scc1 ' + endlabel)
    for n in names:
        a.e('s_load_dwordx2 %s, s[0:1], %d' % (sr(SRD[n], 2), KOFF[n]))
    a.e('v_lshrrev_b32 v1, 6, v0')
    a.e('s_and_b32 s%d, s2, 7' % S_X)
    a.e('v_readfirstlane_b32 s%d, v1' % S_W)
    a.e('s_lshr_b32 s%d, s2, 3' % S_R)
    a.e('v_and_b32 v0, 63, v0')
    for n in names:
        a.e('s_mov_b32 s%d, 0x%x' % (SRD[n] + 2, SIZE[n]))
        a.e('s_mov_b32 s%d, 0x20000' % (SRD[n] + 3))

def stamp(a, idx, enabled, vt=250):
    if not enabled:
        return
    a.e('s_memrealtime s[96:97]')
    a.e('s_lshl_b32 s98, s2, 8')
    a.e('s_add_u32 s98, s98, 0x%x' % (L.STAMP_OFF + idx * 8))
    a.e('s_cmp_lg_u32 s%d, 0' % S_W)
    a.e('s_cselect_b32 s98, 0x%x, s98' % BIG)
    a.e('v_mov_b32 v%d, s96' % vt)
    a.e('v_mov_b32 v%d, s97' % (vt + 1))
    a.e('v_mov_b32 v%d, s98' % (vt + 2))
    a.e('buffer_store_dwordx2 %s, v%d, %s, 0 offen' % (vr(vt, 2), vt + 2, srd('ws')))

def dma(a, voff, s, soff, m0, flags=''):
    a.e('s_mov_b32 m0, %s' % (m0 if isinstance(m0, str) else hex(m0)))
    return a.e('buffer_load_dwordx4 v%d, %s, %s offen%s lds' % (voff, srd(s), soff, flags))

def div_row(a, dst_row, n, magic):
    a.e('v_mul_u32_u24 v%d, %d, v%d' % (dst_row, magic, n))
    a.e('v_lshrrev_b32 v%d, 16, v%d' % (dst_row, dst_row))

def stage0(a, lds0=0, stsc='', usc=''):
    T = 60
    a.e('s_mul_i32 s60, s%d, 6400' % S_W)
    if lds0:
        a.e('s_add_u32 s60, s60, %d' % lds0)
    a.e('s_lshl_b32 s61, s%d, 2' % S_R)
    a.e('s_add_u32 s61, s61, s%d' % S_W)
    a.e('s_mul_i32 s62, s61, 20480')
    a.e('s_mul_i32 s63, s%d, 160' % S_X)
    a.e('s_add_u32 s62, s62, s63')
    a.e('s_sub_u32 s63, s62, 3840')
    for i in range(3):
        a.e('v_add_u32 v1, %d, v0' % (64 * i))
        div_row(a, 2, 1, 6554)
        a.e('v_mul_u32_u24 v2, 1120, v2')
        a.e('v_lshl_add_u32 v2, v1, 4, v2')
        a.e('v_add_u32 v%d, s63, v2' % (4 + i))
        a.e('v_add_u32 v%d, s62, v2' % (7 + i))
    a.e('v_cmp_gt_u32 vcc, 32, v0')
    a.e('v_mov_b32 v1, 0x%x' % BIG)
    a.e('v_cndmask_b32 v9, v1, v9, vcc')
    for i in range(3):
        a.e('s_add_u32 s64, s60, %d' % (1024 * i))
        dma(a, 4 + i, 'k', '0', 's64')
        a.e('s_add_u32 s64, s60, %d' % (3072 + 1024 * i))
        tok = dma(a, 7 + i, 'v', '0', 's64')
    a.e('v_and_b32 v1, 15, v0')
    a.e('v_lshrrev_b32 v2, 5, v0')
    a.e('v_lshl_add_u32 v3, v2, 4, v1')
    a.e('s_mul_i32 s64, s%d, 640' % S_X)
    a.e('v_lshlrev_b32 v10, 3, v3')
    for rd in range(3):
        a.e('buffer_load_dwordx2 %s, v10, %s, s64 offen offset:%d' % (vr(12 + 2 * rd, 2), srd('sk'), 256 * rd))
    a.e('s_lshl_b32 s65, s2, 2')
    a.e('s_add_u32 s65, s65, s%d' % S_W)
    a.e('s_mul_i32 s66, s65, 2560')
    a.e('v_and_b32 v11, 31, v0')
    a.e('v_mul_u32_u24 v18, 1280, v2')
    a.e('v_lshl_add_u32 v19, v11, 3, v18')
    a.e('v_lshl_add_u32 v18, v11, 4, v18')
    a.e('buffer_load_dwordx4 v[20:23], v18, %s, s66 offen' % srd('q'))
    a.e('buffer_load_dwordx4 v[24:27], v18, %s, s66 offen offset:512' % srd('q'))
    a.e('buffer_load_dwordx2 v[28:29], v19, %s, s66 offen offset:1024' % srd('q'))
    a.e('v_bfe_u32 v30, v0, 4, 1')
    a.e('v_bfe_u32 v31, v0, 2, 2')
    a.e('v_and_b32 v32, 3, v0')
    a.e('v_lshlrev_b32 v33, 3, v32')
    a.e('v_lshl_add_u32 v33, v2, 5, v33')
    a.e('v_add_u32 v33, s60, v33')
    a.e('v_xor_b32 v34, 1, v31')
    a.e('v_add_u32 v34, v34, v30')
    a.e('v_mul_u32_u24 v34, 160, v34')
    a.e('v_add_u32 v34, v34, v33')
    a.e('v_lshl_add_u32 v35, v31, 1, v30')
    a.e('v_mul_u32_u24 v35, 160, v35')
    a.e('v_add_u32 v35, v35, v33')
    a.e('s_lshr_b32 s67, s61, 1')
    a.e('s_and_b32 s67, s67, 3')
    a.e('v_xor_b32 v36, s67, v32')
    a.e('v_lshlrev_b32 v36, 4, v36')
    a.e('v_lshl_add_u32 v36, v30, 6, v36')
    a.e('v_lshl_add_u32 v37, v2, 2, v31')
    a.e('v_lshl_add_u32 v36, v37, 14, v36')
    a.e('s_mul_i32 s67, s%d, %d' % (S_X, 20 * 16384))
    a.e('s_lshl_b32 s68, s61, 7')
    a.e('s_add_u32 s67, s67, s68')
    if L.U_OFF:
        a.e('s_add_u32 s67, s67, 0x%x' % L.U_OFF)
    a.e('v_mov_b32 v1, 0x%x' % BIG)
    a.e('v_cndmask_b32 v37, v1, v36, vcc')
    a.e('s_mov_b32 s69, 0xffff0000')
    a.wait_vm_tok(tok)
    KB, VB = 40, 70
    for rd in range(3):
        for n in range(5):
            a.e('ds_read_b64_tr_b16 %s, v34 offset:%d' % (vr(KB + 10 * rd + 2 * n, 2), 640 * n + 64 * rd))
        for n in range(2):
            a.e('ds_read_b64_tr_b16 %s, v35 offset:%d' % (vr(VB + 4 * rd + 2 * n, 2), 3072 + 1280 * n + 64 * rd))
    for rd in range(3):
        P = KB + 10 * rd; V = VB + 4 * rd; A = 84; U = 92; O = 100 + 4 * rd
        for c in range(8):
            a.e('v_dot2_f32_bf16 v%d, v%d, v%d, 0' % (A + c, P + c, 13 + 2 * rd))
        for c in range(8):
            a.e('v_dot2_f32_bf16 v%d, v%d, v%d, v%d' % (A + c, P + c + 1, 12 + 2 * rd, A + c))
        for c in range(4):
            a.e('v_lshlrev_b32 v%d, 16, v%d' % (U + 2 * c, V + c))
            a.e('v_and_b32 v%d, s69, v%d' % (U + 2 * c + 1, V + c))
        for c in range(4):
            a.e('v_pk_mul_f32 %s, %s, %s' % (vr(U + 2 * c, 2), vr(U + 2 * c, 2), vr(A + 2 * c, 2)))
        for c in range(4):
            a.e('v_cvt_pk_bf16_f32 v%d, v%d, v%d' % (O + c, U + 2 * c, U + 2 * c + 1))
        a.e('buffer_store_dwordx4 %s, v%d, %s, s67 offen%s' % (vr(O, 4), 37 if rd == 2 else 36, srd('ws'), usc))
        if rd < 2:
            a.e('s_add_u32 s67, s67, %d' % (8 * 16384))
    a.e('s_mov_b32 s68, 0x3f803f80')
    a.e('v_dot2_f32_bf16 v40, v20, s68, 0')
    a.e('v_dot2_f32_bf16 v41, v20, v20, 0')
    for i in range(1, 10):
        a.e('v_dot2_f32_bf16 v40, v%d, s68, v40' % (20 + i))
        a.e('v_dot2_f32_bf16 v41, v%d, v%d, v41' % (20 + i, 20 + i))
    for ctl in ('quad_perm:[1,0,3,2]', 'quad_perm:[2,3,0,1]', 'row_half_mirror', 'row_mirror'):
        for v in (40, 41):
            a.e('v_add_f32_dpp v%d, v%d, v%d %s row_mask:0xf bank_mask:0xf' % (v, v, v, ctl))
    a.e('v_mov_b32 v42, v40')
    a.e('v_mov_b32 v43, v41')
    a.e('v_permlane16_swap_b32 v40, v42')
    a.e('v_permlane16_swap_b32 v41, v43')
    a.e('v_add_f32 v40, v40, v42')
    a.e('v_add_f32 v41, v41, v43')
    a.e('v_mul_f32 v40, 0x3acccccd, v40')
    a.e('v_mul_f32 v41, 0x3acccccd, v41')
    a.e('v_fma_f32 v41, -v40, v40, v41')
    a.e('v_max_f32 v41, 0, v41')
    a.e('v_add_f32 v41, 0x3727c5ac, v41')
    a.e('v_rsq_f32 v42, v41')
    a.e('v_cmp_eq_u32 vcc, 0, v11')
    a.e('v_lshlrev_b32 v44, 3, v2')
    a.e('v_mul_f32 v43, -v40, v42')
    a.e('v_cndmask_b32 v44, v1, v44, vcc')
    a.e('s_lshl_b32 s66, s65, 4')
    a.e('s_add_u32 s66, s66, 0x%x' % L.ST_OFF)
    a.e('buffer_store_dwordx2 v[42:43], v44, %s, s66 offen%s' % (srd('ws'), stsc))

class CT:
    pass
def conv_type(t):
    c = CT()
    c.t = t
    c.T0, c.nt, c.M0 = [(-96, 10, 1), (1168, 4, 21), (1664, 3, 28)][t]
    c.ML = c.M0 + 2 * (c.nt - 1)
    c.e0 = c.T0 // 16 - 4 * (c.M0 - 1)
    c.nhk = [3, 4, 4][t]
    c.cs = c.nhk * 1024 + 128
    c.nu = [3, 4, 4][t]
    c.PADB = 10
    c.us = 1280 + c.nu * 4096
    c.HK = 0
    c.U = 16 * c.cs
    c.Y = c.U + 2 * c.us
    c.end = c.Y + c.nt * 2 * 2048
    c.chunks = list(range(1 if t == 0 else 0, 2 * c.nt))
    c.lo = [0, 1184, 1680][t]
    return c

def conv_hk_load(a, c):
    a.comment('ssm_k -> LDS')
    a.e('s_lshl_b32 s71, s70, 3')
    a.e('s_add_u32 s71, s71, s%d' % S_W)
    a.e('s_lshl_b32 s72, s71, 12')
    a.e('s_mul_i32 s73, s%d, %d' % (S_W, 2 * c.cs))
    if c.HK:
        a.e('s_add_u32 s73, s73, %d' % c.HK)
    a.e('v_lshlrev_b32 v1, 4, v0')
    a.e('v_add_u32 v2, 4, v1')
    toks = []
    for p in range(2):
        for i in range(c.nhk):
            for cp in range(2):
                a.e('s_add_u32 s74, s73, %d' % (p * 8 * c.cs + cp * c.cs + 32 + 1024 * i))
                a.e('s_add_u32 s75, s72, %d' % (p * 16384 + 1024 * i))
                tok = dma(a, 1 + cp, 'hk', 's75', 's74')
        toks.append(tok)
    a.e('v_and_b32 v3, 1, v0')
    a.e('v_lshlrev_b32 v4, 14, v3')
    a.e('buffer_load_dword v5, v4, %s, s72 offen' % srd('hk'))
    a.e('v_lshlrev_b32 v4, 3, v3')
    a.e('s_lshl_b32 s74, s71, 1')
    a.e('buffer_load_ushort v6, v4, %s, s74 offen' % srd('sd'))
    return toks

def conv_hk_patch(a, c, tok):
    a.comment('patch tap0 += D, zero heads')
    a.e('v_mul_u32_u24 v4, %d, v3' % (8 * c.cs))
    a.e('v_add_u32 v4, s73, v4')
    a.e('v_lshlrev_b32 v7, 16, v5')
    a.e('v_lshlrev_b32 v6, 16, v6')
    a.e('v_add_f32 v6, v6, v7')
    a.e('v_and_b32 v7, 0xffff0000, v5')
    a.e('v_cvt_pk_bf16_f32 v11, v6, v7')
    for r in (8, 9, 10, 12, 13, 14, 15):
        a.e('v_mov_b32 v%d, 0' % r)
    a.wait_vm_tok(tok)
    a.e('s_mov_b64 exec, 3')
    a.e('ds_write_b128 v4, v[12:15]')
    a.e('ds_write_b128 v4, v[12:15] offset:16')
    a.e('ds_write_b32 v4, v11 offset:32')
    a.e('ds_write_b128 v4, v[12:15] offset:%d' % c.cs)
    a.e('ds_write_b128 v4, v[8:11] offset:%d' % (c.cs + 16))
    a.e('s_mov_b64 exec, -1')

def conv_u_zero(a, c):
    a.e('v_lshlrev_b32 v16, 4, v0')
    a.e('s_and_b32 s74, s%d, 1' % S_W)
    a.e('s_mul_i32 s74, s74, %d' % c.us)
    a.e('s_lshr_b32 s75, s%d, 1' % S_W)
    a.e('s_lshl_b32 s75, s75, 8')
    a.e('s_add_u32 s74, s74, s75')
    a.e('s_add_u32 s74, s74, %d' % c.U)
    a.e('v_add_u32 v16, s74, v16')
    a.e('ds_write_b128 v16, v[12:15]')

def conv_u_load(a, c, sc=''):
    a.comment('u -> LDS')
    a.e('v_lshlrev_b32 v1, 4, v0')
    a.e('s_lshl_b32 s76, s70, 15')
    a.e('s_lshl_b32 s77, s%d, 10' % S_W)
    a.e('s_add_u32 s76, s76, s77')
    if L.U_OFF:
        a.e('s_add_u32 s76, s76, 0x%x' % L.U_OFF)
    toks = []
    for p in range(2):
        for i in range(c.nu):
            a.e('s_add_u32 s74, s77, %d' % (c.U + p * c.us + 1280 + 4096 * i))
            a.e('s_add_u32 s75, s76, %d' % (p * 16384 + 4096 * i))
            tok = dma(a, 1, 'ws', 's75', 's74', sc)
        toks.append(tok)
    return toks

VA_H, VA_U0, VA_U1, VA_Y = 17, 18, 19, 20
def conv_addr(a, c):
    a.comment('fragment addresses')
    a.e('v_lshrrev_b32 v21, 4, v0')
    a.e('v_bfe_u32 v22, v0, 2, 2')
    a.e('v_and_b32 v23, 3, v0')
    a.e('v_and_b32 v24, 1, v22')
    a.e('v_mul_u32_u24 v24, %d, v24' % (c.cs - 4))
    a.e('v_lshl_add_u32 v24, v21, 5, v24')
    a.e('v_lshl_add_u32 v24, v23, 3, v24')
    a.e('v_lshlrev_b32 v25, 2, v22')
    a.e('v_sub_u32 v24, v24, v25')
    a.e('s_add_u32 s74, s73, 16')
    a.e('v_add_u32 v%d, s74, v24' % VA_H)
    a.e('v_bfe_u32 v24, v0, 1, 1')
    a.e('v_lshl_add_u32 v24, v24, 2, v22')
    a.e('v_sub_u32 v24, v24, v21')
    a.e('v_and_b32 v26, 1, v0')
    for par, dst in ((0, VA_U0), (1, VA_U1)):
        a.e('v_add_u32 v25, %d, v24' % (c.e0 + 4 * par + 16))
        a.e('v_bfe_u32 v27, v25, 1, 2')
        a.e('v_xor_b32 v27, s%d, v27' % S_W)
        a.e('v_lshlrev_b32 v27, 4, v27')
        a.e('v_lshl_add_u32 v27, v26, 6, v27')
        a.e('v_lshl_add_u32 v27, v25, 7, v27')
        a.e('v_add_u32 v%d, %d, v27' % (dst, c.U + 128 * (c.PADB - 16)))
    a.e('s_lshl_b32 s74, s%d, 8' % S_W)
    a.e('s_add_u32 s74, s74, %d' % c.Y)
    a.e('v_lshl_add_u32 v%d, v0, 2, s74' % VA_Y)

ACC, UF, HF, YT = 32, 72, 148, 164
def conv_pass(a, c, p, fillers=None):
    a.comment('conv pass %d type %d' % (p, c.t))
    nU = min(c.ML, 2 * c.nt + 2)
    if c.t == 0:
        nU = 19
    nH = 4
    ureg = lambda e: UF + 4 * (e % nU)
    hreg = lambda m: HF + 4 * (m % nH)
    def rd_u(e):
        return 'ds_read_b128 %s, v%d offset:%d' % (vr(ureg(e), 4), VA_U1 if e & 1 else VA_U0, p * c.us + 1024 * (e >> 1))
    def rd_h(m):
        o = p * 8 * c.cs + 128 * m
        return ['ds_read_b64_tr_b16 %s, v%d offset:%d' % (vr(hreg(m), 2), VA_H, o + 16),
                'ds_read_b64_tr_b16 %s, v%d offset:%d' % (vr(hreg(m) + 2, 2), VA_H, o)]
    seen = set()
    steps = []
    for m in range(c.ML):
        mf, rd = [], rd_h(m)
        for tau in range(c.nt):
            if m < c.M0 + 2 * tau:
                e = 2 * tau - m + c.M0 - 1
                if e not in seen:
                    seen.add(e); rd.append(rd_u(e))
                mf.append((tau, e))
        steps.append((mf, rd))
    LOOK = 2
    pend = []
    for m in range(min(LOOK, c.ML)):
        for x in steps[m][1]:
            a.e(x)
    post = []
    nm = 0
    def combine(tau):
        D = ACC + 4 * tau; y = YT + 2 * (tau & 1)
        out = []
        if tau == 0:
            out.append('v_add_f32_dpp v%d, v%d, v%d wave_shr:1 row_mask:0xf bank_mask:0xf bound_ctrl:0' % (y, D + 1, D))
        else:
            out.append('v_add_f32_dpp v%d, v%d, v%d wave_ror:1 row_mask:0xf bank_mask:0xf' % (y, D - 1, D))
        out.append('v_add_f32_dpp v%d, v%d, v%d wave_ror:1 row_mask:0xf bank_mask:0xf' % (y + 1, D + 1, D + 2))
        if tau:
            out.append('v_add_f32_dpp v%d, v%d, v%d wave_shr:1 row_mask:0xf bank_mask:0xf' % (y, D + 1, D))
        out.append('v_add_f32_dpp v%d, v%d, v%d wave_shr:1 row_mask:0xf bank_mask:0xf' % (y + 1, D + 3, D + 2))
        o = 16 * tau + 4 * p
        out.append('ds_write2st64_b32 v%d, v%d, v%d offset0:%d offset1:%d' % (VA_Y, y, y + 1, o, o + 8))
        return out
    for m in range(c.ML):
        if m + LOOK < c.ML:
            pend += steps[m + LOOK][1]
        mf = steps[m][0]
        for k, (tau, e) in enumerate(mf):
            D = vr(ACC + 4 * tau, 4)
            a.e('v_mfma_f32_16x16x32_bf16 %s, %s, %s, %s' % (D, vr(ureg(e), 4), vr(hreg(m), 4), D if m else '0'))
            nm += 1
            if m == c.M0 + 2 * tau - 1:
                post += [(nm + 4, x) for x in combine(tau)]
            slots = 2
            left = len(mf) - 1 - k
            while pend and (slots > 0 or len(pend) > 2 * left):
                a.e(pend.pop(0)); slots -= 1
            while slots > 0 and post and post[0][0] <= nm:
                a.e(post.pop(0)[1]); slots -= 1
    for _, x in post:
        a.e(x)

QR, SR_, YR = 72, 112, 132
def conv_epi_loads(a, c, sc=''):
    n = (len(c.chunks) + 3) // 4
    a.e('s_lshl_b32 s74, s%d, 6' % S_W)
    a.e('s_add_u32 s74, s74, %d' % ((c.T0 + 64 * c.chunks[0]) & 0xffffffff))
    a.e('v_add_u32 v28, s74, v0')
    a.e('s_lshl_b32 s78, s70, 4')
    a.e('s_lshl_b32 s79, s70, 15')
    a.e('s_add_u32 s79, s79, 0x%x' % L.H1_OFF)
    a.e('s_mov_b32 s80, 0x%x' % L.ST_OFF)
    a.e('v_mov_b32 v31, 0x%x' % (BIG >> 4))
    end = c.T0 + 128 * c.nt
    for i in range(n):
        a.e('v_add_u32 v29, %d, v28' % (256 * i))
        a.e('v_subrev_u32 v30, %d, v29' % c.lo)
        a.e('v_cmp_gt_u32 vcc, %d, v30' % (end - c.lo))
        a.e('v_cndmask_b32 v29, v31, v29, vcc')
        a.e('v_lshlrev_b32 v%d, 4, v29' % (208 + i))
        a.e('v_mul_u32_u24 v30, 1280, v29')
        a.e('v_cndmask_b32 v30, v%d, v30, vcc' % (208 + i))
        a.e('buffer_load_dwordx4 %s, v30, %s, s78 offen' % (vr(176 + 4 * i, 4), srd('q')))
        a.e('v_lshlrev_b32 v30, 3, v29')
        a.e('buffer_load_dwordx2 %s, v30, %s, s80 offen%s' % (vr(196 + 2 * i, 2), srd('ws'), sc))
    return n

def conv_epilogue(a, c, n, sc=''):
    a.comment('epilogue')
    a.e('s_lshl_b32 s74, s%d, 11' % S_W)
    a.e('s_add_u32 s74, s74, %d' % (c.Y + 2048 * c.chunks[0]))
    a.e('v_lshl_add_u32 v28, v0, 2, s74')
    a.e('s_mov_b32 s69, 0xffff0000')
    for i in range(n):
        for k in range(4):
            a.e('ds_read2st64_b32 %s, v28 offset0:%d offset1:%d' % (vr(32 + 8 * i + 2 * k, 2), 32 * i + 2 * k, 32 * i + 2 * k + 1))
    for i in range(n):
        Q = 80 + 16 * (i & 1); N = Q + 8; O = 112 + 4 * i
        for k in range(4):
            a.e('v_lshlrev_b32 v%d, 16, v%d' % (Q + 2 * k, 176 + 4 * i + k))
            a.e('v_and_b32 v%d, s69, v%d' % (Q + 2 * k + 1, 176 + 4 * i + k))
        S = vr(196 + 2 * i, 2)
        for k in range(4):
            a.e('v_pk_fma_f32 %s, %s, %s, %s op_sel:[0,0,1] op_sel_hi:[1,0,1]' % (vr(N + 2 * k, 2), vr(Q + 2 * k, 2), S, S))
        for k in range(4):
            a.e('v_pk_fma_f32 %s, %s, %s, %s' % (vr(N + 2 * k, 2), vr(N + 2 * k, 2), vr(32 + 8 * i + 2 * k, 2), vr(Q + 2 * k, 2)))
        for k in range(4):
            a.e('v_cvt_pk_bf16_f32 v%d, v%d, v%d' % (O + k, N + 2 * k, N + 2 * k + 1))
        a.e('buffer_store_dwordx4 %s, v%d, %s, s79 offen%s' % (vr(O, 4), 208 + i, srd('ws'), sc))

W1_BYTES = 20 * 7168
def g1_w1_addr(a, base=1):
    a.e('s_and_b32 s81, s%d, 15' % S_R)
    a.e('s_mul_i32 s81, s81, 216')
    for i in range(7):
        a.e('v_add_u32 v8, %d, v0' % (64 * i))
        div_row(a, 9, 8, 4682)
        a.e('v_mul_u32_u24 v10, 14, v9')
        a.e('v_sub_u32 v8, v8, v10')
        a.e('v_bfe_u32 v10, v9, 2, 1')
        a.e('v_bfe_u32 v11, v9, 3, 1')
        a.e('v_and_b32 v9, 19, v9')
        a.e('v_lshl_add_u32 v9, v10, 3, v9')
        a.e('v_lshl_add_u32 v9, v11, 2, v9')
        a.e('v_mul_u32_u24 v9, 3456, v9')
        a.e('v_lshl_add_u32 v%d, v8, 4, v9' % (base + i))

def g1_w1_dma(a, G, base=1):
    if G == 0:
        a.e('s_mul_i32 s82, s%d, %d' % (S_W, 32 * 3456))
        a.e('s_add_u32 s82, s82, s81')
        a.e('s_mul_i32 s83, s%d, 7168' % S_W)
    else:
        a.e('s_add_u32 s82, s82, %d' % (128 * 3456))
    for i in range(7):
        a.e('s_add_u32 s74, s83, %d' % (G * 4 * 7168 + 1024 * i))
        tok = dma(a, base + i, 'w1', 's82', 's74')
    return tok

def g1_ones_addr(a, v):
    a.e('v_and_b32 v%d, 31, v0' % v)
    a.e('v_mul_u32_u24 v%d, 224, v%d' % (v, v))
    a.e('v_add_u32 v%d, s83, v%d' % (v, v))

def g1_frag_addr(a, v):
    a.e('v_bfe_u32 v8, v0, 2, 3')
    a.e('v_lshrrev_b32 v9, 5, v0')
    a.e('v_lshl_add_u32 v8, v9, 4, v8')
    a.e('v_mul_u32_u24 v8, 224, v8')
    a.e('v_and_b32 v9, 3, v0')
    a.e('v_lshl_add_u32 v%d, v9, 3, v8' % v)
    a.e('v_add_u32 v%d, %d, v%d' % (v + 1, 8 * 7168, v))
    a.e('v_add_u32 v%d, %d, v%d' % (v + 2, 16 * 7168, v))

def g1_rd(va, dst, p, nt, hf):
    return 'ds_read_b64_tr_b16 %s, v%d offset:%d' % (vr(dst + 2 * hf, 2), va + p // 8, (p % 8) * 7168 + hf * 1792 + nt * 32)

def g1_h_addr(a, v):
    a.e('v_lshrrev_b32 v8, 4, v0')
    a.e('v_and_b32 v9, 15, v0')
    a.e('v_lshlrev_b32 v9, 4, v9')
    a.e('v_lshl_add_u32 v%d, v8, 15, v9' % v)
    a.e('s_lshr_b32 s84, s%d, 4' % S_R)
    a.e('s_lshl_b32 s85, s%d, 1' % S_X)
    a.e('s_add_u32 s84, s84, s85')
    a.e('s_lshl_b32 s84, s84, 2')
    a.e('s_add_u32 s85, s84, s%d' % S_W)
    a.e('s_lshl_b32 s84, s85, 9')
    a.e('s_add_u32 s84, s84, 0x%x' % L.H1_OFF)

def g1_cs_pass(a, va, tmp, acc, ones, scratch):
    a.comment('colsum pass')
    a.e('s_lshl_b32 s74, s%d, 5' % S_W)
    for i in range(3):
        a.e('v_add_u32 v%d, s74, v%d' % (tmp + i, va + i))
    F = tmp + 4
    NB = 3
    def rds(p):
        for t in range(2):
            for hf in range(2):
                a.e(g1_rd(tmp, F + 8 * (p % NB) + 4 * t, p, 4 * t, hf))
    rds(0); rds(1)
    for p in range(20):
        if p + 2 < 20:
            rds(p + 2)
        for t in range(2):
            D = vr(acc + 4 * t, 4)
            a.e('v_mfma_f32_16x16x32_bf16 %s, %s, %s, %s' % (D, vr(F + 8 * (p % NB) + 4 * t, 4), vr(ones, 4), D if p else '0'))
    a.e('v_lshrrev_b32 v%d, 4, v0' % tmp)
    a.e('v_lshlrev_b32 v%d, 4, v%d' % (tmp, tmp))
    a.e('s_lshl_b32 s74, s%d, 6' % S_W)
    a.e('v_add_u32 v%d, s74, v%d' % (tmp + 1, tmp))
    a.e('v_add_u32 v%d, %d, v%d' % (tmp + 1, scratch, tmp + 1))
    a.e('v_add_u32 v%d, %d, v%d' % (tmp, scratch, tmp))
    a.e('s_mov_b32 exec_lo, 0x00010001')
    a.e('s_mov_b32 exec_hi, 0x00010001')
    a.e('ds_write_b128 v%d, %s' % (tmp + 1, vr(acc, 4)))
    a.e('ds_write_b128 v%d, %s offset:256' % (tmp + 1, vr(acc + 4, 4)))
    a.e('s_mov_b64 exec, -1')

def g1_epilogue(a, ACCB, GR, CS, BB, BRAW, T, sc=''):
    a.comment('GEMM1 epilogue')
    a.e('s_mov_b32 s69, 0xffff0000')
    for nt in range(7):
        for k in range(2):
            a.e('v_lshlrev_b32 v%d, 16, v%d' % (BB + 4 * nt + 2 * k, BRAW + 2 * nt + k))
            a.e('v_and_b32 v%d, s69, v%d' % (BB + 4 * nt + 2 * k + 1, BRAW + 2 * nt + k))
    a.e('v_lshrrev_b32 v%d, 4, v0' % T)
    a.e('v_bfe_u32 v%d, v0, 2, 2' % (T + 1))
    a.e('v_cmp_eq_u32 s[86:87], v%d, v%d' % (T, T + 1))
    a.e('s_mov_b32 s88, 0xaaaaaaaa')
    a.e('s_mov_b32 s89, 0xaaaaaaaa')
    a.e('s_mov_b32 s90, 0xcccccccc')
    a.e('s_mov_b32 s91, 0xcccccccc')
    a.e('s_mov_b32 s92, 0')
    a.e('s_mov_b32 s93, 0xffff0000')
    ST = T + 8
    for mt in range(2):
        g = GR + 4 * mt
        a.e('v_cndmask_b32 v%d, v%d, v%d, s[88:89]' % (T, g, g + 1))
        a.e('v_cndmask_b32 v%d, v%d, v%d, s[88:89]' % (T + 1, g + 2, g + 3))
        a.e('v_cndmask_b32 v%d, v%d, v%d, s[90:91]' % (T, T, T + 1))
        a.e('v_cndmask_b32 v%d, 0, v%d, s[86:87]' % (T, T))
        a.e('v_cndmask_b32 v%d, 0, v%d, s[92:93]' % (T + 1, ACCB + 28 * mt + 24))
        for sw in ('v_permlane32_swap_b32', 'v_permlane16_swap_b32'):
            a.e('v_mov_b32 v%d, v%d' % (T + 2, T))
            a.e('v_mov_b32 v%d, v%d' % (T + 3, T + 1))
            a.e('%s v%d, v%d' % (sw, T, T + 2))
            a.e('%s v%d, v%d' % (sw, T + 1, T + 3))
            a.e('v_add_f32 v%d, v%d, v%d' % (T, T, T + 2))
            a.e('v_add_f32 v%d, v%d, v%d' % (T + 1, T + 1, T + 3))
        a.e('v_mul_f32 v%d, 0x3acccccd, v%d' % (T + 1, T + 1))
        a.e('v_mul_f32 v%d, 0x3acccccd, v%d' % (T, T))
        a.e('v_fma_f32 v%d, -v%d, v%d, v%d' % (T, T + 1, T + 1, T))
        a.e('v_max_f32 v%d, 0, v%d' % (T, T))
        a.e('v_add_f32 v%d, 0x3727c5ac, v%d' % (T + 2, T))
        a.e('v_rsq_f32 v%d, v%d' % (T + 2, T + 2))
        a.e('v_mul_f32 v%d, v%d, v%d' % (T, T, T + 2))
        a.e('v_fmaak_f32 v%d, v%d, v%d, 0x3727c5ac' % (T, T, T + 2))
        a.e('v_rsq_f32 v%d, v%d' % (T, T))
        a.e('v_mul_f32 v%d, v%d, v%d' % (ST + 2 * mt, T, T + 2))
        a.e('v_mul_f32 v%d, -v%d, v%d' % (ST + 2 * mt + 1, T + 1, ST + 2 * mt))
    K = T + 12
    a.e('v_mov_b32 v%d, 0xc0135761' % K)
    a.e('v_mov_b32 v%d, 0xbdd2d3e8' % (K + 1))
    KK = vr(K, 2)
    a.e('s_mul_i32 s94, s85, 112')
    a.e('s_and_b32 s95, s%d, 15' % S_R)
    a.e('s_mul_i32 s95, s95, 7')
    a.e('s_add_u32 s94, s94, s95')
    a.e('s_lshl_b32 s94, s94, 10')
    a.e('s_add_u32 s94, s94, 0x%x' % L.H2_OFF)
    a.e('v_lshlrev_b32 v%d, 4, v0' % (T + 14))
    X = T + 16; E = X + 8; O = E + 8
    for nt in range(7):
        o = O + 4 * (nt & 1)
        pr = [(mt, k) for mt in range(2) for k in range(2)]
        x = lambda i: vr(X + 2 * i, 2)
        e = lambda i: vr(E + 2 * i, 2)
        for i, (mt, k) in enumerate(pr):
            S = vr(ST + 2 * mt, 2)
            a.e('v_pk_fma_f32 %s, %s, %s, %s op_sel:[0,1,0] op_sel_hi:[1,1,1]' % (x(i), vr(CS + 4 * nt + 2 * k, 2), S, vr(BB + 4 * nt + 2 * k, 2)))
        for i, (mt, k) in enumerate(pr):
            S = vr(ST + 2 * mt, 2)
            a.e('v_pk_fma_f32 %s, %s, %s, %s op_sel_hi:[1,0,1]' % (x(i), vr(ACCB + 28 * mt + 4 * nt + 2 * k, 2), S, x(i)))
        for i in range(4):
            a.e('v_pk_mul_f32 %s, %s, %s' % (e(i), x(i), x(i)))
        for i in range(4):
            a.e('v_pk_fma_f32 %s, %s, %s, %s op_sel:[0,1,0] op_sel_hi:[1,1,0]' % (e(i), e(i), KK, KK))
        for i in range(4):
            a.e('v_pk_mul_f32 %s, %s, %s' % (e(i), e(i), x(i)))
        for i in range(8):
            a.e('v_exp_f32 v%d, v%d' % (E + i, E + i))
        for i in range(4):
            a.e('v_pk_add_f32 %s, %s, 1.0 op_sel_hi:[1,0]' % (e(i), e(i)))
        for i in range(8):
            a.e('v_rcp_f32 v%d, v%d' % (E + i, E + i))
        for i in range(4):
            a.e('v_pk_mul_f32 %s, %s, %s' % (e(i), e(i), x(i)))
        for i in range(4):
            a.e('v_cvt_pk_bf16_f32 v%d, v%d, v%d' % (o + i, E + 2 * i, E + 2 * i + 1))
        if nt == 6:
            for i in range(4):
                a.e('v_cndmask_b32 v%d, v%d, 0, s[92:93]' % (o + i, o + i))
        if nt == 4:
            a.e('s_add_u32 s94, s94, 4096')
        a.e('buffer_store_dwordx4 %s, v%d, %s, s94 offen offset:%d%s' % (vr(o, 4), T + 14, srd('ws'), 1024 * (nt & 3), sc))

FT_BYTES = 18432
def g2_w2_addr(a, base):
    for i in range(5):
        a.e('v_add_u32 v8, %d, v0' % (64 * i))
        div_row(a, 9, 8, 6554)
        a.e('v_mul_u32_u24 v9, 1120, v9')
        a.e('v_lshl_add_u32 v%d, v8, 4, v9' % (base + i))
    a.e('v_cmp_gt_u32 vcc, 32, v0')
    a.e('v_mov_b32 v8, 0x%x' % BIG)
    a.e('v_cndmask_b32 v%d, v8, v%d, vcc' % (base + 5, base + 2))
    a.e('s_mul_i32 s60, s%d, %d' % (S_W, 432 * 1280))
    a.e('s_and_b32 s61, s%d, 7' % S_R)
    a.e('s_mul_i32 s61, s61, 160')
    a.e('s_add_u32 s60, s60, s61')

def g2_w2_dma(a, base, ftl, ldsreg, ldsoff):
    for n in range(18):
        if n % 5 == 0:
            a.e('s_add_u32 s75, s60, %d' % ((108 * ftl + 32 * (n // 5)) * 1280))
        a.e('s_add_u32 s74, %s, %d' % (ldsreg, ldsoff + 1024 * n))
        tok = dma(a, base + (5 if n == 17 else n % 5), 'w2', 's75', 's74')
    return tok

def g2_frag_addr(a, v, ldsreg):
    a.e('v_lshrrev_b32 v8, 2, v0')
    a.e('v_mul_u32_u24 v8, 160, v8')
    a.e('v_and_b32 v9, 3, v0')
    a.e('v_lshl_add_u32 v8, v9, 3, v8')
    a.e('v_add_u32 v%d, %s, v8' % (v, ldsreg))
```

```python
import sys
from stages import *
ST = '--stamps' in sys.argv
if '--hold' in sys.argv:
    HOLD[0] = int(sys.argv[sys.argv.index('--hold') + 1]); HOLD[1] = int(sys.argv[sys.argv.index('--hold') + 2])
SC = ' sc1' if '--sc1' in sys.argv else ''

def kernel_head(a, name):
    a.raw('.globl %s\n.p2align 8\n.type %s,@function\n%s:' % (name, name, name))
    a.reset()

def desc(name, vgpr, accum):
    return '''.amdhsa_kernel %s
  .amdhsa_next_free_vgpr %d
  .amdhsa_next_free_sgpr 102
  .amdhsa_accum_offset %d
  .amdhsa_group_segment_fixed_size 0
  .amdhsa_kernarg_size 112
  .amdhsa_user_sgpr_count 2
  .amdhsa_user_sgpr_kernarg_segment_ptr 1
  .amdhsa_system_sgpr_workgroup_id_x 1
  .amdhsa_float_denorm_mode_32 3
.end_amdhsa_kernel
''' % (name, vgpr, accum)

def k0(a):
    kernel_head(a, 'prep_kernel')
    prologue(a, ['q', 'k', 'v', 'sk', 'ws'], 'L_k0_end')
    stamp(a, 0, ST)
    stage0(a, stsc=SC, usc=SC)
    stamp(a, 1, ST)
    a.label('L_k0_end')
    a.e('s_endpgm')

def k1(a):
    kernel_head(a, 'conv_kernel')
    prologue(a, ['q', 'hk', 'sd', 'ws'], 'L_k1_end')
    stamp(a, 2, ST)
    a.e('s_cmp_ge_u32 s%d, 30' % S_R)
    a.e('s_cbranch_scc1 L_k1_idle')
    a.e('s_mul_i32 s70, s%d, 21846' % S_R)
    a.e('s_lshr_b32 s70, s70, 16')
    a.e('s_mul_i32 s71, s70, 3')
    a.e('s_sub_u32 s71, s%d, s71' % S_R)
    a.e('s_mul_i32 s72, s%d, 10' % S_X)
    a.e('s_add_u32 s70, s70, s72')
    a.wait(lg=0)
    a.e('s_cmp_eq_u32 s71, 1')
    a.e('s_cbranch_scc1 L_k1_t1')
    a.e('s_cmp_eq_u32 s71, 2')
    a.e('s_cbranch_scc1 L_k1_t2')
    st = a.state()
    for t in range(3):
        a.restore(st)
        if t:
            a.label('L_k1_t%d' % t)
        c = conv_type(t)
        ut = conv_u_load(a, c)
        ht = conv_hk_load(a, c)
        n = conv_epi_loads(a, c)
        conv_addr(a, c)
        conv_hk_patch(a, c, ht[1])
        conv_u_zero(a, c)
        a.wait(lg=0)
        a.e('s_barrier')
        stamp(a, 3, ST)
        conv_pass(a, c, 0)
        conv_pass(a, c, 1)
        a.wait(lg=0)
        a.e('s_barrier')
        stamp(a, 4, ST)
        conv_epilogue(a, c, n, sc=SC)
        stamp(a, 5, ST)
        a.e('s_endpgm')
    a.restore(st)
    a.label('L_k1_idle')
    a.force_wait(lg=0)
    for i in (3, 4, 5):
        stamp(a, i, ST)
    a.label('L_k1_end')
    a.e('s_endpgm')

def k2(a):
    kernel_head(a, 'mlp1_kernel')
    prologue(a, ['w1', 'b1', 'ws'], 'L_k2_end')
    stamp(a, 6, ST)
    g1_w1_addr(a, 1)
    g1_h_addr(a, 16)
    toks = []
    for G in range(5):
        toks.append(g1_w1_dma(a, G, 1))
        for p in range(4 * G, 4 * G + 4):
            for mt in range(2):
                a.e('buffer_load_dwordx4 %s, v16, %s, s84 offen offset:%d' % (ar(8 * p + 4 * mt, 4), srd('ws'), 256 * mt))
            a.e('s_add_u32 s84, s84, %d' % (4 * 32768))
        if G == 0:
            g1_ones_addr(a, 12)
            g1_frag_addr(a, 13)
            for i in range(4):
                a.e('v_mov_b32 v%d, 0x3f803f80' % (20 + i))
            a.e('v_lshrrev_b32 v17, 4, v0')
            a.e('v_lshlrev_b32 v17, 3, v17')
    for nt in range(7):
        a.e('buffer_load_dwordx2 %s, v17, %s, s81 offen offset:%d' % (vr(152 + 2 * nt, 2), srd('b1'), 32 * nt))
    A, GR, WF = 32, 88, 96
    def ready(G):
        a.wait_vm_tok(toks[G])
        if G == 2 or G == 4:
            a.e('v_add_u32 v12, %d, v12' % (8 * 7168))
        a.e('ds_write_b64 v12, v[20:21] offset:%d' % ((G & 1) * 4 * 7168 + 216))
        a.wait(lg=0)
        a.e('s_barrier')
    ready(0)
    stamp(a, 7, ST)
    for nt in range(7):
        for hf in range(2):
            a.e(g1_rd(13, WF + 4 * nt, 0, nt, hf))
    for p in range(20):
        if p % 4 == 3 and p < 19:
            ready(p // 4 + 1)
        cur = WF + 28 * (p & 1); nxt = WF + 28 * ((p + 1) & 1)
        pend = [g1_rd(13, nxt + 4 * nt, p + 1, nt, hf) for nt in range(7) for hf in range(2)] if p < 19 else []
        for mt in range(2):
            D = vr(GR + 4 * mt, 4); h = ar(8 * p + 4 * mt, 4)
            a.e('v_mfma_f32_16x16x32_bf16 %s, %s, %s, %s' % (D, h, h, D if p else '0'))
        for nt in range(7):
            for mt in range(2):
                D = vr(A + 28 * mt + 4 * nt, 4)
                a.e('v_mfma_f32_16x16x32_bf16 %s, %s, %s, %s' % (D, vr(cur + 4 * nt, 4), ar(8 * p + 4 * mt, 4), D if p else '0'))
                if pend:
                    a.e(pend.pop(0))
    stamp(a, 8, ST)
    g1_cs_pass(a, 13, 168, 24, 20, W1_BYTES)
    a.wait(lg=0)
    a.e('s_barrier')
    for nt in range(7):
        a.e('ds_read_b128 %s, v168 offset:%d' % (vr(96 + 4 * nt, 4), 64 * nt))
    stamp(a, 9, ST)
    g1_epilogue(a, A, GR, 96, 124, 152, 172, sc=SC)
    stamp(a, 10, ST)
    a.label('L_k2_end')
    a.e('s_endpgm')

def k3(a):
    kernel_head(a, 'mlp2_kernel')
    prologue(a, ['w2', 'b2', 'out', 'ws'], 'L_k3_end')
    stamp(a, 11, ST)
    g2_w2_addr(a, 1)
    a.e('s_mul_i32 s64, s%d, %d' % (S_W, 2 * FT_BYTES))
    t0 = g2_w2_dma(a, 1, 0, 's64', 0)
    t1 = g2_w2_dma(a, 1, 1, 's64', FT_BYTES)
    a.e('s_lshr_b32 s65, s%d, 3' % S_R)
    a.e('s_lshl_b32 s66, s%d, 2' % S_X)
    a.e('s_add_u32 s65, s65, s66')
    a.e('s_mul_i32 s62, s65, 224')
    a.e('s_mul_i32 s66, s%d, 28' % S_W)
    a.e('s_add_u32 s62, s62, s66')
    a.e('s_lshl_b32 s62, s62, 10')
    a.e('s_add_u32 s62, s62, 0x%x' % L.H2_OFF)
    a.e('s_add_u32 s63, s62, %d' % (112 * 1024))
    a.e('v_lshlrev_b32 v10, 4, v0')
    ACC2, HR, WJ = 16, 96, 208
    def hload(ks):
        b = HR + 16 * (ks % 7)
        for pr in range(2):
            for hf in range(2):
                a.e('buffer_load_dwordx4 %s, v10, %s, s%d offen offset:%d' % (vr(b + 8 * pr + 4 * hf, 4), srd('ws'), 62 + pr, 2048 * (ks & 1) + 1024 * hf))
        if ks & 1:
            a.e('s_add_u32 s62, s62, 4096')
            a.e('s_add_u32 s63, s63, 4096')
    for ks in range(7):
        hload(ks)
    g2_frag_addr(a, 7, 's64')
    def rd(T, nt, dst):
        return 'ds_read_b64_tr_b16 %s, v7 offset:%d' % (dst, (T // 7) * FT_BYTES + (T % 7) * 2560 + nt * 32)
    for T in range(14):
        if T == 0: a.wait_vm_tok(t0)
        if T == 7: a.wait_vm_tok(t1)
        for nt in range(5):
            a.e(rd(T, nt, ar(20 * (T // 2) + 4 * nt + 2 * (T & 1), 2)))
    a.wait(lg=0)
    t2 = g2_w2_dma(a, 1, 2, 's64', 0)
    t3 = g2_w2_dma(a, 1, 3, 's64', FT_BYTES)
    stamp(a, 12, ST)
    def swaps(ks):
        b = HR + 16 * (ks % 7)
        return ['v_swap_b32 v%d, v%d' % (b + 8 * pr + 2 + k, b + 8 * pr + 4 + k) for pr in range(2) for k in range(2)]
    def jit(ks):
        out = []
        for nt in range(5):
            for hf in range(2):
                out.append(rd(2 * (ks - 7) + hf, nt, vr(WJ + 20 * (ks & 1) + 4 * nt + 2 * hf, 2)))
        return out
    for x in swaps(0):
        a.e(x)
    for ks in range(14):
        b = HR + 16 * (ks % 7)
        pend = []
        if 7 <= ks + 1 < 14:
            if ks + 1 == 7: a.wait_vm_tok(t2)
            if ks + 1 == 10: a.wait_vm_tok(t3)
            pend += jit(ks + 1)
        late = swaps(ks + 1) if ks + 1 < 14 else []
        n = 0
        for nt in range(5):
            W = ar(20 * ks + 4 * nt, 4) if ks < 7 else vr(WJ + 20 * (ks & 1) + 4 * nt, 4)
            for mt in range(4):
                D = vr(ACC2 + 20 * mt + 4 * nt, 4)
                a.e('v_mfma_f32_16x16x32_bf16 %s, %s, %s, %s' % (D, W, vr(b + 4 * mt, 4), D if ks else '0'))
                n += 1
                if pend:
                    a.e(pend.pop(0))
                elif late and n >= 14:
                    a.e(late.pop(0))
        if ks < 7:
            hload(ks + 7)
    stamp(a, 13, ST)
    RS = 336; PW = 64 * RS
    a.e('v_and_b32 v8, 15, v0')
    a.e('v_mul_u32_u24 v8, %d, v8' % RS)
    a.e('v_lshrrev_b32 v9, 4, v0')
    a.e('v_lshl_add_u32 v8, v9, 4, v8')
    a.e('s_mul_i32 s66, s%d, %d' % (S_W, PW))
    a.e('v_add_u32 v8, s66, v8')
    a.e('s_and_b32 s61, s%d, 7' % S_R)
    a.e('s_lshl_b32 s67, s65, 2')
    a.e('s_add_u32 s67, s67, s%d' % S_W)
    a.e('s_mul_i32 s68, s61, %d' % (10 * 32768))
    a.e('s_lshl_b32 s69, s67, 8')
    a.e('s_add_u32 s68, s68, s69')
    a.e('s_add_u32 s68, s68, 0x%x' % L.H1_OFF)
    a.e('s_mul_i32 s69, s61, 160')
    a.e('s_mul_i32 s70, s67, 20480')
    a.e('s_add_u32 s70, s70, s69')
    a.e('s_mul_i32 s71, s%d, %d' % (S_W, 16 * RS))
    a.e('v_cmp_gt_u32 vcc, 32, v0')
    a.e('v_mov_b32 v15, 0x%x' % BIG)
    for i in range(3):
        a.e('v_add_u32 v11, %d, v0' % (64 * i))
        div_row(a, 12, 11, 6554)
        a.e('v_mul_u32_u24 v13, 10, v12')
        a.e('v_sub_u32 v13, v11, v13')
        a.e('v_lshlrev_b32 v14, 4, v12')
        a.e('v_lshl_add_u32 v14, v13, 15, v14')
        if i == 2:
            a.e('v_cndmask_b32 v14, v15, v14, vcc')
        a.e('buffer_load_dwordx4 %s, v14, %s, s68 offen' % (vr(96 + 4 * i, 4), srd('ws')))
        a.e('v_lshlrev_b32 v14, 4, v13')
        a.e('buffer_load_dwordx4 %s, v14, %s, s69 offen' % (vr(108 + 4 * i, 4), srd('b2')))
        a.e('v_mul_u32_u24 v9, 1280, v12')
        a.e('v_add_u32 v%d, v9, v14' % (120 + i))
        if i == 2:
            a.e('v_cndmask_b32 v%d, v15, v%d, vcc' % (120 + i, 120 + i))
        a.e('v_mul_u32_u24 v9, %d, v12' % RS)
        a.e('v_lshl_add_u32 v9, v13, 5, v9')
        a.e('v_add_u32 v%d, s71, v9' % (124 + i))
    a.wait(lg=0)
    a.e('s_barrier')
    for mt in range(4):
        for nt in range(5):
            a.e('ds_write_b128 v8, %s offset:%d' % (vr(ACC2 + 20 * mt + 4 * nt, 4), 16 * RS * mt + 64 * nt))
    a.wait(lg=0)
    a.e('s_barrier')
    a.e('s_mov_b32 s72, 0xffff0000')
    for i in range(3):
        for pw in range(4):
            for hh in range(2):
                a.e('ds_read_b128 %s, v%d offset:%d' % (vr(128 + 32 * i + 8 * pw + 4 * hh, 4), 124 + i, PW * pw + 16 * hh))
    for i in range(3):
        P = 128 + 32 * i; X = 16 + 16 * i
        for k in range(4):
            a.e('v_lshlrev_b32 v%d, 16, v%d' % (X + 2 * k, 96 + 4 * i + k))
            a.e('v_and_b32 v%d, s72, v%d' % (X + 2 * k + 1, 96 + 4 * i + k))
            a.e('v_lshlrev_b32 v%d, 16, v%d' % (X + 8 + 2 * k, 108 + 4 * i + k))
            a.e('v_and_b32 v%d, s72, v%d' % (X + 8 + 2 * k + 1, 108 + 4 * i + k))
        for k in range(4):
            a.e('v_pk_add_f32 %s, %s, %s' % (vr(X + 2 * k, 2), vr(X + 2 * k, 2), vr(X + 8 + 2 * k, 2)))
        for pw in range(4):
            for k in range(4):
                a.e('v_pk_add_f32 %s, %s, %s' % (vr(X + 2 * k, 2), vr(X + 2 * k, 2), vr(P + 8 * pw + 2 * k, 2)))
        for k in range(4):
            a.e('v_cvt_pk_bf16_f32 v%d, v%d, v%d' % (X + 8 + k, X + 2 * k, X + 2 * k + 1))
        a.e('buffer_store_dwordx4 %s, v%d, %s, s70 offen' % (vr(X + 8, 4), 120 + i, srd('out')))
    stamp(a, 14, ST)
    a.label('L_k3_end')
    a.e('s_endpgm')

a = Asm()
hdr = open('cdna_kernels/%s.s.ref' % NAME).read().split('; Override launch')[0]
a.raw(hdr.rstrip())
conv_lds = max(conv_type(t).end for t in range(3))
a.raw('; @launch kernel=prep_kernel grid=(256,1,1) block=(256,1,1) lds=25600')
a.raw('; @launch kernel=conv_kernel grid=(256,1,1) block=(256,1,1) lds=%d' % conv_lds)
a.raw('; @launch kernel=mlp1_kernel grid=(256,1,1) block=(256,1,1) lds=%d' % (W1_BYTES + 512))
a.raw('; @launch kernel=mlp2_kernel grid=(256,1,1) block=(256,1,1) lds=%d' % (8 * FT_BYTES))
a.raw('.amdgcn_target "amdgcn-amd-amdhsa--gfx950"\n.text')
for k in (k0, k1, k2, k3):
    c0 = a.count
    k(a)
    print(k.__name__, a.count - c0, 'instrs', file=sys.stderr)
a.raw('.section .rodata,"a"\n.p2align 6')
a.raw(desc('prep_kernel', 256, 256) + desc('conv_kernel', 256, 256) + desc('mlp1_kernel', 416, 256) + desc('mlp2_kernel', 400, 256))
print('nops', a.nops, file=sys.stderr)
open(sys.argv[1], 'w').write(a.text())
```

```python
from asmlib import *
import layout as L

NAME = 'sequential_preLN__ssm_conv_h3__mixer_channel_mlp__prompt'
S_X, S_R, S_W = 3, 4, 5
SRD = dict(q=8, k=12, v=16, sk=20, hk=24, sd=28, w1=32, b1=36, w2=40, b2=44, out=48, ws=52, dbg=56)
KOFF = dict(q=0, k=8, v=16, sk=24, hk=32, sd=40, w1=56, b1=64, w2=72, b2=80, out=88, dbg=96, ws=104)
SIZE = dict(q=2621440, k=2621440, v=2621440, sk=5120, hk=2621440, sd=1280, w1=2211840, b1=3456, w2=2211840,
            b2=1280, out=2621440, dbg=256, ws=L.WS_SIZE)
def srd(n): return sr(SRD[n], 4)
BIG = 0x7ff00000
V_LANE = 0

def prologue(a, names, endlabel):
    a.e('s_cmp_ge_u32 s2, 256')
    a.e('s_cbranch_scc1 ' + endlabel)
    for n in names:
        a.e('s_load_dwordx2 %s, s[0:1], %d' % (sr(SRD[n], 2), KOFF[n]))
    a.e('v_lshrrev_b32 v1, 6, v0')
    a.e('s_and_b32 s%d, s2, 7' % S_X)
    a.e('v_readfirstlane_b32 s%d, v1' % S_W)
    a.e('s_lshr_b32 s%d, s2, 3' % S_R)
    a.e('v_and_b32 v0, 63, v0')
    for n in names:
        a.e('s_mov_b32 s%d, 0x%x' % (SRD[n] + 2, SIZE[n]))
        a.e('s_mov_b32 s%d, 0x20000' % (SRD[n] + 3))

HOLD = [None, 0]
def stamp(a, idx, enabled, vt=250):
    if HOLD[0] is not None:
        if idx == HOLD[0]:
            HOLD.append(0)
            lab = 'L_hold%d' % len(HOLD)
            a.e('s_lshl_b32 s98, s2, 8')
            a.e('s_add_u32 s98, s98, 0x%x' % L.STAMP_OFF)
            a.e('v_mov_b32 v%d, s98' % vt)
            a.e('buffer_load_dword v%d, v%d, %s, 0 offen' % (vt + 1, vt, srd('ws')))
            a.e('v_readfirstlane_b32 s98, v%d' % (vt + 1))
            a.wait(lg=0)
            a.label(lab)
            a.e('s_memrealtime s[96:97]')
            a.e('s_sub_u32 s96, s96, s98')
            a.e('s_cmp_lt_u32 s96, %d' % HOLD[1])
            a.e('s_cbranch_scc1 ' + lab)
        enabled = idx == 0
    if not enabled:
        return
    a.e('s_memrealtime s[96:97]')
    a.e('s_lshl_b32 s98, s2, 8')
    a.e('s_add_u32 s98, s98, 0x%x' % (L.STAMP_OFF + idx * 8))
    a.e('s_cmp_lg_u32 s%d, 0' % S_W)
    a.e('s_cselect_b32 s98, 0x%x, s98' % BIG)
    a.e('v_mov_b32 v%d, s96' % vt)
    a.e('v_mov_b32 v%d, s97' % (vt + 1))
    a.e('v_mov_b32 v%d, s98' % (vt + 2))
    a.e('buffer_store_dwordx2 %s, v%d, %s, 0 offen' % (vr(vt, 2), vt + 2, srd('ws')))

def dma(a, voff, s, soff, m0, flags=''):
    a.e('s_mov_b32 m0, %s' % (m0 if isinstance(m0, str) else hex(m0)))
    return a.e('buffer_load_dwordx4 v%d, %s, %s offen%s lds' % (voff, srd(s), soff, flags))

def div_row(a, dst_row, n, magic):
    a.e('v_mul_u32_u24 v%d, %d, v%d' % (dst_row, magic, n))
    a.e('v_lshrrev_b32 v%d, 16, v%d' % (dst_row, dst_row))

def stage0(a, lds0=0, stsc='', usc=''):
    T = 60
    a.e('s_mul_i32 s60, s%d, 6400' % S_W)
    if lds0:
        a.e('s_add_u32 s60, s60, %d' % lds0)
    a.e('s_lshl_b32 s61, s%d, 2' % S_R)
    a.e('s_add_u32 s61, s61, s%d' % S_W)
    a.e('s_mul_i32 s62, s61, 20480')
    a.e('s_mul_i32 s63, s%d, 160' % S_X)
    a.e('s_add_u32 s62, s62, s63')
    a.e('s_sub_u32 s63, s62, 3840')
    for i in range(3):
        a.e('v_add_u32 v1, %d, v0' % (64 * i))
        div_row(a, 2, 1, 6554)
        a.e('v_mul_u32_u24 v2, 1120, v2')
        a.e('v_lshl_add_u32 v2, v1, 4, v2')
        a.e('v_add_u32 v%d, s63, v2' % (4 + i))
        a.e('v_add_u32 v%d, s62, v2' % (7 + i))
    a.e('v_cmp_gt_u32 vcc, 32, v0')
    a.e('v_mov_b32 v1, 0x%x' % BIG)
    a.e('v_cndmask_b32 v9, v1, v9, vcc')
    for i in range(3):
        a.e('s_add_u32 s64, s60, %d' % (1024 * i))
        dma(a, 4 + i, 'k', '0', 's64')
        a.e('s_add_u32 s64, s60, %d' % (3072 + 1024 * i))
        tok = dma(a, 7 + i, 'v', '0', 's64')
    a.e('v_and_b32 v1, 15, v0')
    a.e('v_lshrrev_b32 v2, 5, v0')
    a.e('v_lshl_add_u32 v3, v2, 4, v1')
    a.e('s_mul_i32 s64, s%d, 640' % S_X)
    a.e('v_lshlrev_b32 v10, 3, v3')
    for rd in range(3):
        a.e('buffer_load_dwordx2 %s, v10, %s, s64 offen offset:%d' % (vr(12 + 2 * rd, 2), srd('sk'), 256 * rd))
    a.e('s_lshl_b32 s65, s2, 2')
    a.e('s_add_u32 s65, s65, s%d' % S_W)
    a.e('s_mul_i32 s66, s65, 2560')
    a.e('v_and_b32 v11, 31, v0')
    a.e('v_mul_u32_u24 v18, 1280, v2')
    a.e('v_lshl_add_u32 v19, v11, 3, v18')
    a.e('v_lshl_add_u32 v18, v11, 4, v18')
    a.e('buffer_load_dwordx4 v[20:23], v18, %s, s66 offen' % srd('q'))
    a.e('buffer_load_dwordx4 v[24:27], v18, %s, s66 offen offset:512' % srd('q'))
    a.e('buffer_load_dwordx2 v[28:29], v19, %s, s66 offen offset:1024' % srd('q'))
    a.e('v_bfe_u32 v30, v0, 4, 1')
    a.e('v_bfe_u32 v31, v0, 2, 2')
    a.e('v_and_b32 v32, 3, v0')
    a.e('v_lshlrev_b32 v33, 3, v32')
    a.e('v_lshl_add_u32 v33, v2, 5, v33')
    a.e('v_add_u32 v33, s60, v33')
    a.e('v_xor_b32 v34, 1, v31')
    a.e('v_add_u32 v34, v34, v30')
    a.e('v_mul_u32_u24 v34, 160, v34')
    a.e('v_add_u32 v34, v34, v33')
    a.e('v_lshl_add_u32 v35, v31, 1, v30')
    a.e('v_mul_u32_u24 v35, 160, v35')
    a.e('v_add_u32 v35, v35, v33')
    a.e('s_lshr_b32 s67, s61, 1')
    a.e('s_and_b32 s67, s67, 3')
    a.e('v_xor_b32 v36, s67, v32')
    a.e('v_lshlrev_b32 v36, 4, v36')
    a.e('v_lshl_add_u32 v36, v30, 6, v36')
    a.e('v_lshl_add_u32 v37, v2, 2, v31')
    a.e('v_lshl_add_u32 v36, v37, 14, v36')
    a.e('s_mul_i32 s67, s%d, %d' % (S_X, 20 * 16384))
    a.e('s_lshl_b32 s68, s61, 7')
    a.e('s_add_u32 s67, s67, s68')
    if L.U_OFF:
        a.e('s_add_u32 s67, s67, 0x%x' % L.U_OFF)
    a.e('v_mov_b32 v1, 0x%x' % BIG)
    a.e('v_cndmask_b32 v37, v1, v36, vcc')
    a.e('s_mov_b32 s69, 0xffff0000')
    a.wait_vm_tok(tok)
    KB, VB = 40, 70
    for rd in range(3):
        for n in range(5):
            a.e('ds_read_b64_tr_b16 %s, v34 offset:%d' % (vr(KB + 10 * rd + 2 * n, 2), 640 * n + 64 * rd))
        for n in range(2):
            a.e('ds_read_b64_tr_b16 %s, v35 offset:%d' % (vr(VB + 4 * rd + 2 * n, 2), 3072 + 1280 * n + 64 * rd))
    for rd in range(3):
        P = KB + 10 * rd; V = VB + 4 * rd; A = 84; U = 92; O = 100 + 4 * rd
        for c in range(8):
            a.e('v_dot2_f32_bf16 v%d, v%d, v%d, 0' % (A + c, P + c, 13 + 2 * rd))
        for c in range(8):
            a.e('v_dot2_f32_bf16 v%d, v%d, v%d, v%d' % (A + c, P + c + 1, 12 + 2 * rd, A + c))
        for c in range(4):
            a.e('v_lshlrev_b32 v%d, 16, v%d' % (U + 2 * c, V + c))
            a.e('v_and_b32 v%d, s69, v%d' % (U + 2 * c + 1, V + c))
        for c in range(4):
            a.e('v_pk_mul_f32 %s, %s, %s' % (vr(U + 2 * c, 2), vr(U + 2 * c, 2), vr(A + 2 * c, 2)))
        for c in range(4):
            a.e('v_cvt_pk_bf16_f32 v%d, v%d, v%d' % (O + c, U + 2 * c, U + 2 * c + 1))
        a.e('buffer_store_dwordx4 %s, v%d, %s, s67 offen%s' % (vr(O, 4), 37 if rd == 2 else 36, srd('ws'), usc))
        if rd < 2:
            a.e('s_add_u32 s67, s67, %d' % (8 * 16384))
    a.e('s_mov_b32 s68, 0x3f803f80')
    a.e('v_dot2_f32_bf16 v40, v20, s68, 0')
    a.e('v_dot2_f32_bf16 v41, v20, v20, 0')
    for i in range(1, 10):
        a.e('v_dot2_f32_bf16 v40, v%d, s68, v40' % (20 + i))
        a.e('v_dot2_f32_bf16 v41, v%d, v%d, v41' % (20 + i, 20 + i))
    for ctl in ('quad_perm:[1,0,3,2]', 'quad_perm:[2,3,0,1]', 'row_half_mirror', 'row_mirror'):
        for v in (40, 41):
            a.e('v_add_f32_dpp v%d, v%d, v%d %s row_mask:0xf bank_mask:0xf' % (v, v, v, ctl))
    a.e('v_mov_b32 v42, v40')
    a.e('v_mov_b32 v43, v41')
    a.e('v_permlane16_swap_b32 v40, v42')
    a.e('v_permlane16_swap_b32 v41, v43')
    a.e('v_add_f32 v40, v40, v42')
    a.e('v_add_f32 v41, v41, v43')
    a.e('v_mul_f32 v40, 0x3acccccd, v40')
    a.e('v_mul_f32 v41, 0x3acccccd, v41')
    a.e('v_fma_f32 v41, -v40, v40, v41')
    a.e('v_max_f32 v41, 0, v41')
    a.e('v_add_f32 v41, 0x3727c5ac, v41')
    a.e('v_rsq_f32 v42, v41')
    a.e('v_cmp_eq_u32 vcc, 0, v11')
    a.e('v_lshlrev_b32 v44, 3, v2')
    a.e('v_mul_f32 v43, -v40, v42')
    a.e('v_cndmask_b32 v44, v1, v44, vcc')
    a.e('s_lshl_b32 s66, s65, 4')
    a.e('s_add_u32 s66, s66, 0x%x' % L.ST_OFF)
    a.e('buffer_store_dwordx2 v[42:43], v44, %s, s66 offen%s' % (srd('ws'), stsc))

class CT:
    pass
def conv_type(t):
    c = CT()
    c.t = t
    c.T0, c.nt, c.M0 = [(-96, 10, 1), (1168, 4, 21), (1664, 3, 28)][t]
    c.ML = c.M0 + 2 * (c.nt - 1)
    c.e0 = c.T0 // 16 - 4 * (c.M0 - 1)
    c.nhk = [3, 4, 4][t]
    c.cs = c.nhk * 1024 + 128
    c.nu = [3, 4, 4][t]
    c.PADB = 10
    c.us = 1280 + c.nu * 4096
    c.HK = 0
    c.U = 16 * c.cs
    c.Y = c.U + 2 * c.us
    c.end = c.Y + c.nt * 2 * 2048
    c.chunks = list(range(1 if t == 0 else 0, 2 * c.nt))
    c.lo = [0, 1184, 1680][t]
    return c

def conv_hk_load(a, c):
    a.comment('ssm_k -> LDS')
    a.e('s_lshl_b32 s71, s70, 3')
    a.e('s_add_u32 s71, s71, s%d' % S_W)
    a.e('s_lshl_b32 s72, s71, 12')
    a.e('s_mul_i32 s73, s%d, %d' % (S_W, 2 * c.cs))
    if c.HK:
        a.e('s_add_u32 s73, s73, %d' % c.HK)
    a.e('v_lshlrev_b32 v1, 4, v0')
    a.e('v_add_u32 v2, 4, v1')
    toks = []
    for p in range(2):
        for i in range(c.nhk):
            for cp in range(2):
                a.e('s_add_u32 s74, s73, %d' % (p * 8 * c.cs + cp * c.cs + 32 + 1024 * i))
                a.e('s_add_u32 s75, s72, %d' % (p * 16384 + 1024 * i))
                tok = dma(a, 1 + cp, 'hk', 's75', 's74')
        toks.append(tok)
    a.e('v_and_b32 v3, 1, v0')
    a.e('v_lshlrev_b32 v4, 14, v3')
    a.e('buffer_load_dword v5, v4, %s, s72 offen' % srd('hk'))
    a.e('v_lshlrev_b32 v4, 3, v3')
    a.e('s_lshl_b32 s74, s71, 1')
    a.e('buffer_load_ushort v6, v4, %s, s74 offen' % srd('sd'))
    return toks

def conv_hk_patch(a, c, tok):
    a.comment('patch tap0 += D, zero heads')
    a.e('v_mul_u32_u24 v4, %d, v3' % (8 * c.cs))
    a.e('v_add_u32 v4, s73, v4')
    a.e('v_lshlrev_b32 v7, 16, v5')
    a.e('v_lshlrev_b32 v6, 16, v6')
    a.e('v_add_f32 v6, v6, v7')
    a.e('v_and_b32 v7, 0xffff0000, v5')
    a.e('v_cvt_pk_bf16_f32 v11, v6, v7')
    for r in (8, 9, 10, 12, 13, 14, 15):
        a.e('v_mov_b32 v%d, 0' % r)
    a.wait_vm_tok(tok)
    a.e('s_mov_b64 exec, 3')
    a.e('ds_write_b128 v4, v[12:15]')
    a.e('ds_write_b128 v4, v[12:15] offset:16')
    a.e('ds_write_b32 v4, v11 offset:32')
    a.e('ds_write_b128 v4, v[12:15] offset:%d' % c.cs)
    a.e('ds_write_b128 v4, v[8:11] offset:%d' % (c.cs + 16))
    a.e('s_mov_b64 exec, -1')

def conv_u_zero(a, c):
    a.e('v_lshlrev_b32 v16, 4, v0')
    a.e('s_and_b32 s74, s%d, 1' % S_W)
    a.e('s_mul_i32 s74, s74, %d' % c.us)
    a.e('s_lshr_b32 s75, s%d, 1' % S_W)
    a.e('s_lshl_b32 s75, s75, 8')
    a.e('s_add_u32 s74, s74, s75')
    a.e('s_add_u32 s74, s74, %d' % c.U)
    a.e('v_add_u32 v16, s74, v16')
    a.e('ds_write_b128 v16, v[12:15]')

def conv_u_load(a, c, sc=''):
    a.comment('u -> LDS')
    a.e('v_lshlrev_b32 v1, 4, v0')
    a.e('s_lshl_b32 s76, s70, 15')
    a.e('s_lshl_b32 s77, s%d, 10' % S_W)
    a.e('s_add_u32 s76, s76, s77')
    if L.U_OFF:
        a.e('s_add_u32 s76, s76, 0x%x' % L.U_OFF)
    toks = []
    for p in range(2):
        for i in range(c.nu):
            a.e('s_add_u32 s74, s77, %d' % (c.U + p * c.us + 1280 + 4096 * i))
            a.e('s_add_u32 s75, s76, %d' % (p * 16384 + 4096 * i))
            tok = dma(a, 1, 'ws', 's75', 's74', sc)
        toks.append(tok)
    return toks

VA_H, VA_U0, VA_U1, VA_Y = 17, 18, 19, 20
def conv_addr(a, c):
    a.comment('fragment addresses')
    a.e('v_lshrrev_b32 v21, 4, v0')
    a.e('v_bfe_u32 v22, v0, 2, 2')
    a.e('v_and_b32 v23, 3, v0')
    a.e('v_and_b32 v24, 1, v22')
    a.e('v_mul_u32_u24 v24, %d, v24' % (c.cs - 4))
    a.e('v_lshl_add_u32 v24, v21, 5, v24')
    a.e('v_lshl_add_u32 v24, v23, 3, v24')
    a.e('v_lshlrev_b32 v25, 2, v22')
    a.e('v_sub_u32 v24, v24, v25')
    a.e('s_add_u32 s74, s73, 16')
    a.e('v_add_u32 v%d, s74, v24' % VA_H)
    a.e('v_bfe_u32 v24, v0, 1, 1')
    a.e('v_lshl_add_u32 v24, v24, 2, v22')
    a.e('v_sub_u32 v24, v24, v21')
    a.e('v_and_b32 v26, 1, v0')
    for par, dst in ((0, VA_U0), (1, VA_U1)):
        a.e('v_add_u32 v25, %d, v24' % (c.e0 + 4 * par + 16))
        a.e('v_bfe_u32 v27, v25, 1, 2')
        a.e('v_xor_b32 v27, s%d, v27' % S_W)
        a.e('v_lshlrev_b32 v27, 4, v27')
        a.e('v_lshl_add_u32 v27, v26, 6, v27')
        a.e('v_lshl_add_u32 v27, v25, 7, v27')
        a.e('v_add_u32 v%d, %d, v27' % (dst, c.U + 128 * (c.PADB - 16)))
    a.e('s_lshl_b32 s74, s%d, 8' % S_W)
    a.e('s_add_u32 s74, s74, %d' % c.Y)
    a.e('v_lshl_add_u32 v%d, v0, 2, s74' % VA_Y)

ACC, UF, HF, YT = 32, 72, 148, 164
def conv_pass(a, c, p, fillers=None):
    a.comment('conv pass %d type %d' % (p, c.t))
    nU = min(c.ML, 2 * c.nt + 2)
    if c.t == 0:
        nU = 19
    nH = 4
    ureg = lambda e: UF + 4 * (e % nU)
    hreg = lambda m: HF + 4 * (m % nH)
    def rd_u(e):
        return 'ds_read_b128 %s, v%d offset:%d' % (vr(ureg(e), 4), VA_U1 if e & 1 else VA_U0, p * c.us + 1024 * (e >> 1))
    def rd_h(m):
        o = p * 8 * c.cs + 128 * m
        return ['ds_read_b64_tr_b16 %s, v%d offset:%d' % (vr(hreg(m), 2), VA_H, o + 16),
                'ds_read_b64_tr_b16 %s, v%d offset:%d' % (vr(hreg(m) + 2, 2), VA_H, o)]
    seen = set()
    steps = []
    for m in range(c.ML):
        mf, rd = [], rd_h(m)
        for tau in range(c.nt):
            if m < c.M0 + 2 * tau:
                e = 2 * tau - m + c.M0 - 1
                if e not in seen:
                    seen.add(e); rd.append(rd_u(e))
                mf.append((tau, e))
        steps.append((mf, rd))
    LOOK = 2
    pend = []
    for m in range(min(LOOK, c.ML)):
        for x in steps[m][1]:
            a.e(x)
    post = []
    nm = 0
    def combine(tau):
        D = ACC + 4 * tau; y = YT + 2 * (tau & 1)
        out = []
        if tau == 0:
            out.append('v_add_f32_dpp v%d, v%d, v%d wave_shr:1 row_mask:0xf bank_mask:0xf bound_ctrl:0' % (y, D + 1, D))
        else:
            out.append('v_add_f32_dpp v%d, v%d, v%d wave_ror:1 row_mask:0xf bank_mask:0xf' % (y, D - 1, D))
        out.append('v_add_f32_dpp v%d, v%d, v%d wave_ror:1 row_mask:0xf bank_mask:0xf' % (y + 1, D + 1, D + 2))
        if tau:
            out.append('v_add_f32_dpp v%d, v%d, v%d wave_shr:1 row_mask:0xf bank_mask:0xf' % (y, D + 1, D))
        out.append('v_add_f32_dpp v%d, v%d, v%d wave_shr:1 row_mask:0xf bank_mask:0xf' % (y + 1, D + 3, D + 2))
        o = 16 * tau + 4 * p
        out.append('ds_write2st64_b32 v%d, v%d, v%d offset0:%d offset1:%d' % (VA_Y, y, y + 1, o, o + 8))
        return out
    for m in range(c.ML):
        if m + LOOK < c.ML:
            pend += steps[m + LOOK][1]
        mf = steps[m][0]
        for k, (tau, e) in enumerate(mf):
            D = vr(ACC + 4 * tau, 4)
            a.e('v_mfma_f32_16x16x32_bf16 %s, %s, %s, %s' % (D, vr(ureg(e), 4), vr(hreg(m), 4), D if m else '0'))
            nm += 1
            if m == c.M0 + 2 * tau - 1:
                post += [(nm + 4, x) for x in combine(tau)]
            slots = 2
            left = len(mf) - 1 - k
            while pend and (slots > 0 or len(pend) > 2 * left):
                a.e(pend.pop(0)); slots -= 1
            while slots > 0 and post and post[0][0] <= nm:
                a.e(post.pop(0)[1]); slots -= 1
    for _, x in post:
        a.e(x)

QR, SR_, YR = 72, 112, 132
def conv_epi_loads(a, c, sc=''):
    n = (len(c.chunks) + 3) // 4
    a.e('s_lshl_b32 s74, s%d, 6' % S_W)
    a.e('s_add_u32 s74, s74, %d' % ((c.T0 + 64 * c.chunks[0]) & 0xffffffff))
    a.e('v_add_u32 v28, s74, v0')
    a.e('s_lshl_b32 s78, s70, 4')
    a.e('s_lshl_b32 s79, s70, 15')
    a.e('s_add_u32 s79, s79, 0x%x' % L.H1_OFF)
    a.e('s_mov_b32 s80, 0x%x' % L.ST_OFF)
    a.e('v_mov_b32 v31, 0x%x' % (BIG >> 4))
    end = c.T0 + 128 * c.nt
    for i in range(n):
        a.e('v_add_u32 v29, %d, v28' % (256 * i))
        a.e('v_subrev_u32 v30, %d, v29' % c.lo)
        a.e('v_cmp_gt_u32 vcc, %d, v30' % (end - c.lo))
        a.e('v_cndmask_b32 v29, v31, v29, vcc')
        a.e('v_lshlrev_b32 v%d, 4, v29' % (208 + i))
        a.e('v_mul_u32_u24 v30, 1280, v29')
        a.e('v_cndmask_b32 v30, v%d, v30, vcc' % (208 + i))
        a.e('buffer_load_dwordx4 %s, v30, %s, s78 offen' % (vr(176 + 4 * i, 4), srd('q')))
        a.e('v_lshlrev_b32 v30, 3, v29')
        a.e('buffer_load_dwordx2 %s, v30, %s, s80 offen%s' % (vr(196 + 2 * i, 2), srd('ws'), sc))
    return n

def conv_epilogue(a, c, n, sc=''):
    a.comment('epilogue')
    a.e('s_lshl_b32 s74, s%d, 11' % S_W)
    a.e('s_add_u32 s74, s74, %d' % (c.Y + 2048 * c.chunks[0]))
    a.e('v_lshl_add_u32 v28, v0, 2, s74')
    a.e('s_mov_b32 s69, 0xffff0000')
    for i in range(n):
        for k in range(4):
            a.e('ds_read2st64_b32 %s, v28 offset0:%d offset1:%d' % (vr(32 + 8 * i + 2 * k, 2), 32 * i + 2 * k, 32 * i + 2 * k + 1))
    for i in range(n):
        Q = 80 + 16 * (i & 1); N = Q + 8; O = 112 + 4 * i
        for k in range(4):
            a.e('v_lshlrev_b32 v%d, 16, v%d' % (Q + 2 * k, 176 + 4 * i + k))
            a.e('v_and_b32 v%d, s69, v%d' % (Q + 2 * k + 1, 176 + 4 * i + k))
        S = vr(196 + 2 * i, 2)
        for k in range(4):
            a.e('v_pk_fma_f32 %s, %s, %s, %s op_sel:[0,0,1] op_sel_hi:[1,0,1]' % (vr(N + 2 * k, 2), vr(Q + 2 * k, 2), S, S))
        for k in range(4):
            a.e('v_pk_fma_f32 %s, %s, %s, %s' % (vr(N + 2 * k, 2), vr(N + 2 * k, 2), vr(32 + 8 * i + 2 * k, 2), vr(Q + 2 * k, 2)))
        for k in range(4):
            a.e('v_cvt_pk_bf16_f32 v%d, v%d, v%d' % (O + k, N + 2 * k, N + 2 * k + 1))
        a.e('buffer_store_dwordx4 %s, v%d, %s, s79 offen%s' % (vr(O, 4), 208 + i, srd('ws'), sc))

W1_BYTES = 20 * 7168
def g1_w1_addr(a, base=1):
    a.e('s_and_b32 s81, s%d, 15' % S_R)
    a.e('s_mul_i32 s81, s81, 216')
    for i in range(7):
        a.e('v_add_u32 v8, %d, v0' % (64 * i))
        div_row(a, 9, 8, 4682)
        a.e('v_mul_u32_u24 v10, 14, v9')
        a.e('v_sub_u32 v8, v8, v10')
        a.e('v_bfe_u32 v10, v9, 2, 1')
        a.e('v_bfe_u32 v11, v9, 3, 1')
        a.e('v_and_b32 v9, 19, v9')
        a.e('v_lshl_add_u32 v9, v10, 3, v9')
        a.e('v_lshl_add_u32 v9, v11, 2, v9')
        a.e('v_mul_u32_u24 v9, 3456, v9')
        a.e('v_lshl_add_u32 v%d, v8, 4, v9' % (base + i))

def g1_w1_dma(a, G, base=1):
    if G == 0:
        a.e('s_mul_i32 s82, s%d, %d' % (S_W, 32 * 3456))
        a.e('s_add_u32 s82, s82, s81')
        a.e('s_mul_i32 s83, s%d, 7168' % S_W)
    else:
        a.e('s_add_u32 s82, s82, %d' % (128 * 3456))
    for i in range(7):
        a.e('s_add_u32 s74, s83, %d' % (G * 4 * 7168 + 1024 * i))
        tok = dma(a, base + i, 'w1', 's82', 's74')
    return tok

def g1_ones_addr(a, v):
    a.e('v_and_b32 v%d, 31, v0' % v)
    a.e('v_mul_u32_u24 v%d, 224, v%d' % (v, v))
    a.e('v_add_u32 v%d, s83, v%d' % (v, v))

def g1_frag_addr(a, v):
    a.e('v_bfe_u32 v8, v0, 2, 3')
    a.e('v_lshrrev_b32 v9, 5, v0')
    a.e('v_lshl_add_u32 v8, v9, 4, v8')
    a.e('v_mul_u32_u24 v8, 224, v8')
    a.e('v_and_b32 v9, 3, v0')
    a.e('v_lshl_add_u32 v%d, v9, 3, v8' % v)
    a.e('v_add_u32 v%d, %d, v%d' % (v + 1, 8 * 7168, v))
    a.e('v_add_u32 v%d, %d, v%d' % (v + 2, 16 * 7168, v))

def g1_rd(va, dst, p, nt, hf):
    return 'ds_read_b64_tr_b16 %s, v%d offset:%d' % (vr(dst + 2 * hf, 2), va + p // 8, (p % 8) * 7168 + hf * 1792 + nt * 32)

def g1_h_addr(a, v):
    a.e('v_lshrrev_b32 v8, 4, v0')
    a.e('v_and_b32 v9, 15, v0')
    a.e('v_lshlrev_b32 v9, 4, v9')
    a.e('v_lshl_add_u32 v%d, v8, 15, v9' % v)
    a.e('s_lshr_b32 s84, s%d, 4' % S_R)
    a.e('s_lshl_b32 s85, s%d, 1' % S_X)
    a.e('s_add_u32 s84, s84, s85')
    a.e('s_lshl_b32 s84, s84, 2')
    a.e('s_add_u32 s85, s84, s%d' % S_W)
    a.e('s_lshl_b32 s84, s85, 9')
    a.e('s_add_u32 s84, s84, 0x%x' % L.H1_OFF)

def g1_cs_pass(a, va, tmp, acc, ones, scratch):
    a.comment('colsum pass')
    a.e('s_lshl_b32 s74, s%d, 5' % S_W)
    for i in range(3):
        a.e('v_add_u32 v%d, s74, v%d' % (tmp + i, va + i))
    F = tmp + 4
    NB = 3
    def rds(p):
        for t in range(2):
            for hf in range(2):
                a.e(g1_rd(tmp, F + 8 * (p % NB) + 4 * t, p, 4 * t, hf))
    rds(0); rds(1)
    for p in range(20):
        if p + 2 < 20:
            rds(p + 2)
        for t in range(2):
            D = vr(acc + 4 * t, 4)
            a.e('v_mfma_f32_16x16x32_bf16 %s, %s, %s, %s' % (D, vr(F + 8 * (p % NB) + 4 * t, 4), vr(ones, 4), D if p else '0'))
    a.e('v_lshrrev_b32 v%d, 4, v0' % tmp)
    a.e('v_lshlrev_b32 v%d, 4, v%d' % (tmp, tmp))
    a.e('s_lshl_b32 s74, s%d, 6' % S_W)
    a.e('v_add_u32 v%d, s74, v%d' % (tmp + 1, tmp))
    a.e('v_add_u32 v%d, %d, v%d' % (tmp + 1, scratch, tmp + 1))
    a.e('v_add_u32 v%d, %d, v%d' % (tmp, scratch, tmp))
    a.e('s_mov_b32 exec_lo, 0x00010001')
    a.e('s_mov_b32 exec_hi, 0x00010001')
    a.e('ds_write_b128 v%d, %s' % (tmp + 1, vr(acc, 4)))
    a.e('ds_write_b128 v%d, %s offset:256' % (tmp + 1, vr(acc + 4, 4)))
    a.e('s_mov_b64 exec, -1')

def g1_epilogue(a, ACCB, GR, CS, BB, BRAW, T, sc=''):
    a.comment('GEMM1 epilogue')
    a.e('s_mov_b32 s69, 0xffff0000')
    for nt in range(7):
        for k in range(2):
            a.e('v_lshlrev_b32 v%d, 16, v%d' % (BB + 4 * nt + 2 * k, BRAW + 2 * nt + k))
            a.e('v_and_b32 v%d, s69, v%d' % (BB + 4 * nt + 2 * k + 1, BRAW + 2 * nt + k))
    a.e('v_lshrrev_b32 v%d, 4, v0' % T)
    a.e('v_bfe_u32 v%d, v0, 2, 2' % (T + 1))
    a.e('v_cmp_eq_u32 s[86:87], v%d, v%d' % (T, T + 1))
    a.e('s_mov_b32 s88, 0xaaaaaaaa')
    a.e('s_mov_b32 s89, 0xaaaaaaaa')
    a.e('s_mov_b32 s90, 0xcccccccc')
    a.e('s_mov_b32 s91, 0xcccccccc')
    a.e('s_mov_b32 s92, 0')
    a.e('s_mov_b32 s93, 0xffff0000')
    ST = T + 8
    for mt in range(2):
        g = GR + 4 * mt
        a.e('v_cndmask_b32 v%d, v%d, v%d, s[88:89]' % (T, g, g + 1))
        a.e('v_cndmask_b32 v%d, v%d, v%d, s[88:89]' % (T + 1, g + 2, g + 3))
        a.e('v_cndmask_b32 v%d, v%d, v%d, s[90:91]' % (T, T, T + 1))
        a.e('v_cndmask_b32 v%d, 0, v%d, s[86:87]' % (T, T))
        a.e('v_cndmask_b32 v%d, 0, v%d, s[92:93]' % (T + 1, ACCB + 28 * mt + 24))
        for sw in ('v_permlane32_swap_b32', 'v_permlane16_swap_b32'):
            a.e('v_mov_b32 v%d, v%d' % (T + 2, T))
            a.e('v_mov_b32 v%d, v%d' % (T + 3, T + 1))
            a.e('%s v%d, v%d' % (sw, T, T + 2))
            a.e('%s v%d, v%d' % (sw, T + 1, T + 3))
            a.e('v_add_f32 v%d, v%d, v%d' % (T, T, T + 2))
            a.e('v_add_f32 v%d, v%d, v%d' % (T + 1, T + 1, T + 3))
        a.e('v_mul_f32 v%d, 0x3acccccd, v%d' % (T + 1, T + 1))
        a.e('v_mul_f32 v%d, 0x3acccccd, v%d' % (T, T))
        a.e('v_fma_f32 v%d, -v%d, v%d, v%d' % (T, T + 1, T + 1, T))
        a.e('v_max_f32 v%d, 0, v%d' % (T, T))
        a.e('v_add_f32 v%d, 0x3727c5ac, v%d' % (T + 2, T))
        a.e('v_rsq_f32 v%d, v%d' % (T + 2, T + 2))
        a.e('v_mul_f32 v%d, v%d, v%d' % (T, T, T + 2))
        a.e('v_fmaak_f32 v%d, v%d, v%d, 0x3727c5ac' % (T, T, T + 2))
        a.e('v_rsq_f32 v%d, v%d' % (T, T))
        a.e('v_mul_f32 v%d, v%d, v%d' % (ST + 2 * mt, T, T + 2))
        a.e('v_mul_f32 v%d, -v%d, v%d' % (ST + 2 * mt + 1, T + 1, ST + 2 * mt))
    K = T + 12
    a.e('v_mov_b32 v%d, 0xc0135761' % K)
    a.e('v_mov_b32 v%d, 0xbdd2d3e8' % (K + 1))
    KK = vr(K, 2)
    a.e('s_mul_i32 s94, s85, 112')
    a.e('s_and_b32 s95, s%d, 15' % S_R)
    a.e('s_mul_i32 s95, s95, 7')
    a.e('s_add_u32 s94, s94, s95')
    a.e('s_lshl_b32 s94, s94, 10')
    a.e('s_add_u32 s94, s94, 0x%x' % L.H2_OFF)
    a.e('v_lshlrev_b32 v%d, 4, v0' % (T + 14))
    X = T + 16; E = X + 8; O = E + 8
    for nt in range(7):
        o = O + 4 * (nt & 1)
        pr = [(mt, k) for mt in range(2) for k in range(2)]
        x = lambda i: vr(X + 2 * i, 2)
        e = lambda i: vr(E + 2 * i, 2)
        for i, (mt, k) in enumerate(pr):
            S = vr(ST + 2 * mt, 2)
            a.e('v_pk_fma_f32 %s, %s, %s, %s op_sel:[0,1,0] op_sel_hi:[1,1,1]' % (x(i), vr(CS + 4 * nt + 2 * k, 2), S, vr(BB + 4 * nt + 2 * k, 2)))
        for i, (mt, k) in enumerate(pr):
            S = vr(ST + 2 * mt, 2)
            a.e('v_pk_fma_f32 %s, %s, %s, %s op_sel_hi:[1,0,1]' % (x(i), vr(ACCB + 28 * mt + 4 * nt + 2 * k, 2), S, x(i)))
        for i in range(4):
            a.e('v_pk_mul_f32 %s, %s, %s' % (e(i), x(i), x(i)))
        for i in range(4):
            a.e('v_pk_fma_f32 %s, %s, %s, %s op_sel:[0,1,0] op_sel_hi:[1,1,0]' % (e(i), e(i), KK, KK))
        for i in range(4):
            a.e('v_pk_mul_f32 %s, %s, %s' % (e(i), e(i), x(i)))
        for i in range(8):
            a.e('v_exp_f32 v%d, v%d' % (E + i, E + i))
        for i in range(4):
            a.e('v_pk_add_f32 %s, %s, 1.0 op_sel_hi:[1,0]' % (e(i), e(i)))
        for i in range(8):
            a.e('v_rcp_f32 v%d, v%d' % (E + i, E + i))
        for i in range(4):
            a.e('v_pk_mul_f32 %s, %s, %s' % (e(i), e(i), x(i)))
        for i in range(4):
            a.e('v_cvt_pk_bf16_f32 v%d, v%d, v%d' % (o + i, E + 2 * i, E + 2 * i + 1))
        if nt == 6:
            for i in range(4):
                a.e('v_cndmask_b32 v%d, v%d, 0, s[92:93]' % (o + i, o + i))
        if nt == 4:
            a.e('s_add_u32 s94, s94, 4096')
        a.e('buffer_store_dwordx4 %s, v%d, %s, s94 offen offset:%d%s' % (vr(o, 4), T + 14, srd('ws'), 1024 * (nt & 3), sc))

FT_BYTES = 18432
def g2_w2_addr(a, base):
    for i in range(5):
        a.e('v_add_u32 v8, %d, v0' % (64 * i))
        div_row(a, 9, 8, 6554)
        a.e('v_mul_u32_u24 v9, 1120, v9')
        a.e('v_lshl_add_u32 v%d, v8, 4, v9' % (base + i))
    a.e('v_cmp_gt_u32 vcc, 32, v0')
    a.e('v_mov_b32 v8, 0x%x' % BIG)
    a.e('v_cndmask_b32 v%d, v8, v%d, vcc' % (base + 5, base + 2))
    a.e('s_mul_i32 s60, s%d, %d' % (S_W, 432 * 1280))
    a.e('s_and_b32 s61, s%d, 7' % S_R)
    a.e('s_mul_i32 s61, s61, 160')
    a.e('s_add_u32 s60, s60, s61')

def g2_w2_dma(a, base, ftl, ldsreg, ldsoff):
    for n in range(18):
        if n % 5 == 0:
            a.e('s_add_u32 s75, s60, %d' % ((108 * ftl + 32 * (n // 5)) * 1280))
        a.e('s_add_u32 s74, %s, %d' % (ldsreg, ldsoff + 1024 * n))
        tok = dma(a, base + (5 if n == 17 else n % 5), 'w2', 's75', 's74')
    return tok

def g2_frag_addr(a, v, ldsreg):
    a.e('v_lshrrev_b32 v8, 2, v0')
    a.e('v_mul_u32_u24 v8, 160, v8')
    a.e('v_and_b32 v9, 3, v0')
    a.e('v_lshl_add_u32 v8, v9, 3, v8')
    a.e('v_add_u32 v%d, %s, v8' % (v, ldsreg))
```
